```python
import torch

def _softmax(x, axis=-1):
    return torch.softmax(x, dim=axis)
def _gelu(x):
    return torch.nn.functional.gelu(x, approximate="tanh")
def _silu(x):
    return torch.nn.functional.silu(x)
def _sigmoid(x):
    return torch.sigmoid(x)
def _layernorm(x, axis=-1, eps=1e-5):
    m = x.mean(dim=axis, keepdim=True)
    v = x.var(dim=axis, keepdim=True, unbiased=False)
    return (x - m) / torch.sqrt(v + eps)
def _scatter_add(tgt, idx, src, axis=0):
    return tgt.clone().index_add_(axis, idx, src)
def _segment_sum(src, seg, n):
    out = torch.zeros((n,) + src.shape[1:], dtype=src.dtype)
    return out.index_add_(0, seg, src)
def _pad(x, pw):
    flat = tuple(v for pair in reversed(pw) for v in pair)
    return torch.nn.functional.pad(x, flat)

kernel_name = 'parallel_sum__sliding_block_cached__glu_gated_geglu__decode'

def setup_inputs():

    _w = (lambda a: (lambda t: t.to(torch.bfloat16) if t.is_floating_point() else t)(torch.as_tensor(a)))
    def _A_setup():
        B, Sq, D = 1, 1, 512
        Hq, Hkv, Sk, Dh = 32, 8, 65536, 128
        assert Hq % Hkv == 0, (Hq, Hkv)
        return {
            "x": _w((lambda *s: torch.randn(*s, dtype=torch.bfloat16) * 0.05)(B, Sq, D)),
            "k_cache": _w((lambda *s: torch.randn(*s, dtype=torch.bfloat16) * 1.6)(B, Hkv, Sk, Dh)),
            "v_cache": _w((lambda *s: torch.randn(*s, dtype=torch.bfloat16) * 0.8)(B, Hkv, Sk, Dh)),
            "wq": _w((lambda *s: torch.randn(*s, dtype=torch.bfloat16) * 1.6)(D, Hq * Dh) * (D ** -0.5)),
            "wo": _w((lambda *s: torch.randn(*s, dtype=torch.bfloat16) * 0.8)(Hq * Dh, D) * ((Hq * Dh) ** -0.5)),
        }
    _A_in = _A_setup()

    def _B_setup():
        B, S, Dm, Df = 1, 1, 512, 1792
        return {
            "x": _w((lambda *s: torch.randn(*s, dtype=torch.bfloat16) * 0.05)(B, S, Dm)),
            "w_gate": _w((lambda *s: torch.randn(*s, dtype=torch.bfloat16) * 0.4)(Dm, Df) * (Dm ** -0.5)),
            "w_up": _w((lambda *s: torch.randn(*s, dtype=torch.bfloat16) * 0.4)(Dm, Df) * (Dm ** -0.5)),
            "w_down": _w((lambda *s: torch.randn(*s, dtype=torch.bfloat16) * 0.4)(Df, Dm) * (Df ** -0.5)),
        }
    _B_in = _B_setup()

    return {
        "A_x": _A_in["x"],
        "A_k_cache": _A_in["k_cache"],
        "A_v_cache": _A_in["v_cache"],
        "A_wq": _A_in["wq"],
        "A_wo": _A_in["wo"],
        "B_x": _B_in["x"],
        "B_w_gate": _B_in["w_gate"],
        "B_w_up": _B_in["w_up"],
        "B_w_down": _B_in["w_down"],
    }

def reference(A_x, A_k_cache, A_v_cache, A_wq, A_wo, B_x, B_w_gate, B_w_up, B_w_down):
    def _A_ref(x, k_cache, v_cache, wq, wo):
        B, Sq, D = x.shape
        Hq, Dh = 32, 128
        Hkv, Sk = k_cache.shape[1], k_cache.shape[2]
        W = min(4096, max(256, Sk // 4))
        rep = Hq // Hkv
        q = (lambda x, *d: x.permute(*d))((x @ wq).reshape(B, Sq, Hq, Dh), 0, 2, 1, 3)
        k = (lambda x, n, axis: torch.repeat_interleave(x, n, dim=axis))(k_cache[:, :, Sk - W:, :], rep, axis=1)
        v = (lambda x, n, axis: torch.repeat_interleave(x, n, dim=axis))(v_cache[:, :, Sk - W:, :], rep, axis=1)
        scores = torch.einsum("bhqd,bhkd->bhqk", q, k) * (Dh ** -0.5)
        p = _softmax(scores, axis=-1)
        o = torch.einsum("bhqk,bhkd->bhqd", p, v)
        return (lambda x, *d: x.permute(*d))(o, 0, 2, 1, 3).reshape(B, Sq, Hq * Dh) @ wo

    def _B_ref(x, w_gate, w_up, w_down):
        g = torch.einsum("bsd,df->bsf", x, w_gate)
        u = torch.einsum("bsd,df->bsf", x, w_up)
        h = _gelu(g) * u
        return torch.einsum("bsf,fd->bsd", h, w_down)

    x = A_x
    xn = _layernorm(x, axis=-1)
    return x + _A_ref(xn, A_k_cache, A_v_cache, A_wq, A_wo) + _B_ref(xn, B_w_gate, B_w_up, B_w_down)
```

```python
KNAME = "parallel_sum__sliding_block_cached__glu_gated_geglu__decode_kernel"

HEADER_LAYOUT = """; Kernarg layout for this problem (96 bytes, ptrs only, base s[0:1]):
"""

class Asm:
    def __init__(self):
        self.lines = []
        self.lbl = 0
    def __call__(self, s):
        for ln in s.strip("\n").split("\n"):
            ln = ln.rstrip()
            if not ln.strip():
                continue
            t = ln.strip()
            if t.endswith(":") and not t.startswith(";"):
                self.lines.append(t)
            else:
                self.lines.append("    " + t)
    def c(self, s):
        self.lines.append("    ; " + s)
    def label(self, base="L"):
        self.lbl += 1
        return "%s_%d" % (base, self.lbl)
    def text(self):
        return "\n".join(self.lines) + "\n"

def vr(a, n=1):
    return "v%d" % a if n == 1 else "v[%d:%d]" % (a, a + n - 1)
def sr(a, n=1):
    return "s%d" % a if n == 1 else "s[%d:%d]" % (a, a + n - 1)
def ar(a, n=1):
    return "a%d" % a if n == 1 else "a[%d:%d]" % (a, a + n - 1)

def wrap(body, grid, block, lds, nvgpr, nsgpr, accum=None, kname=KNAME):
    if accum is None:
        accum = (nvgpr + 3) // 4 * 4
    s = HEADER_LAYOUT
    s += "; @launch grid=(%d,1,1) block=(%d,1,1) lds=%d\n" % (grid, block, lds)
    s += '.amdgcn_target "amdgcn-amd-amdhsa--gfx950"\n.text\n'
    s += ".globl %s\n.p2align 8\n.type %s,@function\n%s:\n" % (kname, kname, kname)
    s += body
    s += "    s_endpgm\n"
    s += '.section .rodata,"a"\n.p2align 6\n.amdhsa_kernel %s\n' % kname
    s += "  .amdhsa_next_free_vgpr %d\n  .amdhsa_next_free_sgpr %d\n  .amdhsa_accum_offset %d\n" % (nvgpr, nsgpr, accum)
    s += "  .amdhsa_group_segment_fixed_size 0\n  .amdhsa_kernarg_size 96\n  .amdhsa_user_sgpr_count 2\n"
    s += "  .amdhsa_user_sgpr_kernarg_segment_ptr 1\n  .amdhsa_system_sgpr_workgroup_id_x 1\n"
    s += "  .amdhsa_float_denorm_mode_32 3\n"
    s += ".end_amdhsa_kernel\n"
    return s
```

```python
import sys
from asmgen import *

LOG2E = 1.4426950408889634
import struct
def f2u(f):
    return struct.unpack("<I", struct.pack("<f", f))[0]

def gen(nt=True, stamps=False):
    a = Asm()
    NT = " nt" if nt else ""
    SK, SV, SWQ, SWO, SG, SU, SD, SWS, SX = 64, 68, 72, 76, 80, 84, 88, 92, 96
    a("s_cmp_ge_u32 s2, 256")
    a("s_cbranch_scc1 L_end")
    a("s_load_dwordx16 s[16:31], s[0:1], 0")
    a("s_load_dwordx8 s[32:39], s[0:1], 64")
    a("v_lshrrev_b32 v1, 6, v0")
    a("v_and_b32 v2, 63, v0")
    a("s_and_b32 s3, s2, 7")
    a("s_lshr_b32 s4, s2, 3")
    a("s_nop 0")
    a("v_readfirstlane_b32 s5, v1")
    a("s_waitcnt lgkmcnt(0)")
    def srd(dst, ptr, size):
        a("s_mov_b32 s%d, s%d" % (dst, ptr))
        a("s_and_b32 s%d, s%d, 0xffff" % (dst + 1, ptr + 1))
        a("s_mov_b32 s%d, 0x%x" % (dst + 2, size))
        a("s_mov_b32 s%d, 0x20000" % (dst + 3))
    srd(SK, 18, 134217728); srd(SV, 20, 134217728); srd(SWQ, 22, 4194304); srd(SWO, 24, 4194304)
    srd(SG, 28, 1835008); srd(SU, 30, 1835008); srd(SD, 32, 1835008); srd(SWS, 38, 536870912)
    srd(SX, 16, 1024)
    def S(b): return "s[%d:%d]" % (b, b + 3)
    VX = 12
    VWQ = 16
    VG = 32
    VU = 40
    VK = 48
    VV = 80
    VWO = 112
    VD = 128
    T = 136
    a("v_lshlrev_b32 v7, 4, v2")
    a("buffer_load_dwordx4 v[%d:%d], v7, %s, 0 offen" % (VX, VX + 3, S(SX)))
    a("v_lshrrev_b32 v3, 1, v2")
    a("v_lshlrev_b32 v3, 13, v3")
    a("v_and_b32 v4, 1, v2")
    a("v_lshlrev_b32 v4, 4, v4")
    a("v_add_u32 v3, v3, v4")
    a("s_lshl_b32 s6, s3, 10")
    a("s_lshl_b32 s7, s4, 5")
    a("s_add_u32 s6, s6, s7")
    a("s_lshl_b32 s7, s5, 20")
    a("s_add_u32 s6, s6, s7")
    for i in range(4):
        a("s_add_u32 s14, s6, %d" % (i * 32 * 8192))
        a("buffer_load_dwordx4 v[%d:%d], v3, %s, s14 offen%s" % (VWQ + 4 * i, VWQ + 4 * i + 3, S(SWQ), NT))
    a("v_mul_u32_u24 v8, 3584, v2")
    a("s_mul_i32 s15, s3, 28")
    a("s_add_u32 s15, s15, s4")
    a("s_lshl_b32 s11, s15, 4")
    a("s_mul_i32 s12, s5, %d" % (128 * 3584))
    a("s_add_u32 s11, s11, s12")
    a("s_cmp_ge_u32 s4, 28")
    a("s_cselect_b32 s11, 0x7f000000, s11")
    a("v_mov_b32 v9, 0x7f000000")
    a("s_cselect_b32 s13, 1, 0")
    a("v_mov_b32 v10, s13")
    a("v_cmp_eq_u32 vcc, 1, v10")
    a("s_nop 1")
    a("v_cndmask_b32 v8, v8, v9, vcc")
    a("s_cmp_ge_u32 s4, 28")
    a("s_cselect_b32 s11, 0, s11")
    for mi, (m, r0) in enumerate(((SG, VG), (SU, VU))):
        for i in range(2):
            a("s_add_u32 s14, s11, %d" % (i * 64 * 3584))
            a("buffer_load_dwordx4 v[%d:%d], v8, %s, s14 offen%s" % (r0 + 4 * i, r0 + 4 * i + 3, S(m), NT))
    a("s_lshl_b32 s8, s3, 24")
    a("s_lshl_b32 s9, s4, 15")
    a("s_add_u32 s8, s8, s9")
    a("s_add_u32 s8, s8, %d" % (61440 * 256))
    a("s_lshl_b32 s9, s5, 13")
    a("s_add_u32 s8, s8, s9")
    a("v_and_b32 v5, 15, v2")
    a("v_lshlrev_b32 v5, 8, v5")
    a("v_lshrrev_b32 v6, 4, v2")
    a("v_lshlrev_b32 v6, 4, v6")
    a("v_add_u32 v5, v5, v6")
    a("v_lshrrev_b32 v6, 4, v2")
    a("v_lshlrev_b32 v6, 10, v6")
    a("v_and_b32 v4, 15, v2")
    a("v_lshlrev_b32 v4, 4, v4")
    a("v_add_u32 v6, v6, v4")
    for t in range(2):
        a("s_add_u32 s14, s8, %d" % (t * 4096))
        for i in range(4):
            r = VK + 16 * t + 4 * i
            a("buffer_load_dwordx4 v[%d:%d], v5, %s, s14 offen offset:%d%s" % (r, r + 3, S(SK), i * 64, NT))
    for t in range(2):
        a("s_add_u32 s14, s8, %d" % (t * 4096))
        for i in range(4):
            r = VV + 16 * t + 4 * i
            a("buffer_load_dwordx4 v[%d:%d], v6, %s, s14 offen offset:%d%s" % (r, r + 3, S(SV), i * 256, NT))
    a("s_lshl_b32 s10, s2, 14")
    a("s_lshl_b32 s9, s5, 12")
    a("s_add_u32 s10, s10, s9")
    for i in range(4):
        a("buffer_load_dwordx4 v[%d:%d], v7, %s, s10 offen offset:%d%s" % (VWO + 4 * i, VWO + 4 * i + 3, S(SWO), i * 1024, NT))
    a("s_lshl_b32 s12, s15, 13")
    a("s_lshl_b32 s9, s5, 11")
    a("s_add_u32 s12, s12, s9")
    a("v_mov_b32 v11, v7")
    a("v_cndmask_b32 v11, v11, v9, vcc")
    a("s_cmp_ge_u32 s4, 28")
    a("s_cselect_b32 s12, 0, s12")
    for i in range(2):
        a("buffer_load_dwordx4 v[%d:%d], v11, %s, s12 offen offset:%d%s" % (VD + 4 * i, VD + 4 * i + 3, S(SD), i * 1024, NT))
    def unpack(dst, src, n):
        for k in range(n):
            a("v_lshlrev_b32 v%d, 16, v%d" % (dst + 2 * k, src + k))
            a("v_and_b32 v%d, 0xffff0000, v%d" % (dst + 2 * k + 1, src + k))
    def allreduce(op, v, t):
        for rot in (8, 4, 2, 1):
            a("s_nop 1")
            a("%s_dpp v%d, v%d, v%d row_ror:%d row_mask:0xf bank_mask:0xf" % (op, v, v, v, rot))
        a("v_mov_b32 v%d, v%d" % (t, v))
        a("s_nop 1")
        a("v_permlane16_swap_b32 v%d, v%d" % (v, t))
        a("s_nop 1")
        a("%s v%d, v%d, v%d" % (op, v, v, t))
        a("v_mov_b32 v%d, v%d" % (t, v))
        a("s_nop 1")
        a("v_permlane32_swap_b32 v%d, v%d" % (v, t))
        a("s_nop 1")
        a("%s v%d, v%d, v%d" % (op, v, v, t))
    def rbf(v):
        a("v_cvt_pk_bf16_f32 v%d, v%d, v%d" % (v, v, v))
        a("v_and_b32 v%d, 0xffff0000, v%d" % (v, v))
    a("s_waitcnt vmcnt(30)")
    XF = T
    unpack(XF, VX, 4)
    a("v_add_f32 v%d, v%d, v%d" % (T + 8, XF, XF + 1))
    for k in range(2, 8):
        a("v_add_f32 v%d, v%d, v%d" % (T + 8, T + 8, XF + k))
    allreduce("v_add_f32", T + 8, T + 9)
    a("v_mul_f32 v%d, 0x%x, v%d" % (T + 8, f2u(1.0 / 512), T + 8))
    for k in range(8):
        a("v_sub_f32 v%d, v%d, v%d" % (T + 10 + k, XF + k, T + 8))
    a("v_mul_f32 v%d, v%d, v%d" % (T + 9, T + 10, T + 10))
    for k in range(1, 8):
        a("v_fmac_f32 v%d, v%d, v%d" % (T + 9, T + 10 + k, T + 10 + k))
    allreduce("v_add_f32", T + 9, T + 18)
    a("v_mul_f32 v%d, 0x%x, v%d" % (T + 9, f2u(1.0 / 512), T + 9))
    rbf(T + 8)
    rbf(T + 9)
    a("v_add_f32 v%d, 0x%x, v%d" % (T + 9, f2u(1e-5), T + 9))
    rbf(T + 9)
    a("v_sqrt_f32 v%d, v%d" % (T + 9, T + 9))
    a("s_nop 0")
    rbf(T + 9)
    a("v_rcp_f32 v%d, v%d" % (T + 9, T + 9))
    for k in range(8):
        a("v_sub_f32 v%d, v%d, v%d" % (XF + k, XF + k, T + 8))
        rbf(XF + k)
        a("v_mul_f32 v%d, v%d, v%d" % (XF + k, XF + k, T + 9))
        rbf(XF + k)
    LXN = 0
    a("v_lshlrev_b32 v4, 5, v2")
    a("ds_write_b128 v4, v[%d:%d] offset:%d" % (XF, XF + 3, LXN))
    a("ds_write_b128 v4, v[%d:%d] offset:%d" % (XF + 4, XF + 7, LXN + 16))
    a("s_waitcnt lgkmcnt(0)")
    a("v_lshrrev_b32 v4, 1, v2")
    a("s_lshl_b32 s9, s5, 7")
    a("v_add_u32 v4, s9, v4")
    a("v_lshlrev_b32 v4, 2, v4")
    for i in range(4):
        a("ds_read_b32 v%d, v4 offset:%d" % (T + 20 + i, LXN + i * 128))
    a("v_add_u32 v9, s9, v2")
    a("v_lshlrev_b32 v9, 2, v9")
    for i in range(2):
        a("ds_read_b32 v%d, v9 offset:%d" % (T + 24 + i, LXN + i * 256))
    ACC = T + 28
    W8 = T + 8
    a("s_waitcnt vmcnt(26) lgkmcnt(0)")
    for i in range(4):
        unpack(W8, VWQ + 4 * i, 4)
        for k in range(8):
            if i == 0:
                a("v_mul_f32 v%d, v%d, v%d" % (ACC + k, W8 + k, T + 20 + i))
            else:
                a("v_fmac_f32 v%d, v%d, v%d" % (ACC + k, W8 + k, T + 20 + i))
    def reduce_accs(accs, rots):
        l1 = []
        a("s_nop 1")
        for k in range(0, len(accs), 2):
            a("v_permlane32_swap_b32 v%d, v%d" % (accs[k], accs[k + 1]))
        a("s_nop 1")
        for k in range(0, len(accs), 2):
            a("v_add_f32 v%d, v%d, v%d" % (accs[k], accs[k], accs[k + 1]))
            l1.append(accs[k])
        a("s_nop 1")
        l2 = []
        for k in range(0, len(l1), 2):
            a("v_permlane16_swap_b32 v%d, v%d" % (l1[k], l1[k + 1]))
        a("s_nop 1")
        for k in range(0, len(l1), 2):
            a("v_add_f32 v%d, v%d, v%d" % (l1[k], l1[k], l1[k + 1]))
            l2.append(l1[k])
        for rot in rots:
            a("s_nop 1")
            for r in l2:
                if rot == "x2":
                    a("v_add_f32_dpp v%d, v%d, v%d quad_perm:[2,3,0,1] row_mask:0xf bank_mask:0xf" % (r, r, r))
                else:
                    a("v_add_f32_dpp v%d, v%d, v%d row_ror:%d row_mask:0xf bank_mask:0xf" % (r, r, r, rot))
        return l2
    qr = reduce_accs([ACC + k for k in range(8)], [8, 4, "x2"])
    LQP = 2048
    LGP = 2304
    a("v_lshrrev_b32 v9, 4, v2")
    a("v_and_b32 v10, 1, v9")
    a("v_lshlrev_b32 v10, 1, v10")
    a("v_lshrrev_b32 v9, 1, v9")
    a("v_or_b32 v10, v10, v9")
    a("v_and_b32 v9, 1, v2")
    a("v_lshlrev_b32 v9, 3, v9")
    a("v_add_u32 v9, v9, v10")
    a("s_lshl_b32 s9, s5, 4")
    a("v_add_u32 v9, s9, v9")
    a("v_lshlrev_b32 v9, 2, v9")
    a("v_and_b32 v4, 15, v2")
    a("v_cmp_gt_u32 vcc, 2, v4")
    a("s_and_saveexec_b64 s[40:41], vcc")
    a("ds_write_b32 v9, v%d offset:%d" % (qr[0], LQP))
    a("ds_write_b32 v9, v%d offset:%d" % (qr[1], LQP + 16))
    a("s_mov_b64 exec, s[40:41]")
    AG = T + 28
    a("s_waitcnt vmcnt(22)")
    for mi, r0 in enumerate((VG, VU)):
        for i in range(2):
            unpack(W8, r0 + 4 * i, 4)
            for k in range(8):
                if i == 0:
                    a("v_mul_f32 v%d, v%d, v%d" % (AG + 8 * mi + k, W8 + k, T + 24 + i))
                else:
                    a("v_fmac_f32 v%d, v%d, v%d" % (AG + 8 * mi + k, W8 + k, T + 24 + i))
    gr = reduce_accs([AG + k for k in range(16)], [8, 4, 2, 1])
    a("s_lshl_b32 s9, s5, 4")
    a("v_add_u32 v9, s9, v10")
    a("v_lshlrev_b32 v9, 2, v9")
    a("v_and_b32 v4, 15, v2")
    a("v_cmp_eq_u32 vcc, 0, v4")
    a("s_and_saveexec_b64 s[40:41], vcc")
    for m in range(4):
        a("ds_write_b32 v9, v%d offset:%d" % (gr[m], LGP + 16 * m))
    a("s_mov_b64 exec, s[40:41]")
    a("s_waitcnt lgkmcnt(0)")
    a("s_barrier")
    a("v_and_b32 v4, 15, v2")
    a("v_lshlrev_b32 v4, 2, v4")
    for wv in range(4):
        a("ds_read_b32 v%d, v4 offset:%d" % (T + wv, LQP + 64 * wv))
        a("ds_read_b32 v%d, v4 offset:%d" % (T + 4 + wv, LGP + 64 * wv))
    a("s_waitcnt lgkmcnt(0)")
    a("v_add_f32 v%d, v%d, v%d" % (T, T, T + 1))
    a("v_add_f32 v%d, v%d, v%d" % (T + 2, T + 2, T + 3))
    a("v_add_f32 v%d, v%d, v%d" % (T, T, T + 2))
    a("v_add_f32 v%d, v%d, v%d" % (T + 4, T + 4, T + 5))
    a("v_add_f32 v%d, v%d, v%d" % (T + 6, T + 6, T + 7))
    a("v_add_f32 v%d, v%d, v%d" % (T + 4, T + 4, T + 6))
    WS_Q = 0x10000
    WS_O = 0x20000
    WS_ML = 0xC0000
    WS_P = 0x100000
    a("v_cvt_pk_bf16_f32 v%d, v%d, v%d" % (T, T, T))
    a("s_lshl_b32 s9, s3, 10")
    a("s_lshl_b32 s14, s4, 5")
    a("s_add_u32 s9, s9, s14")
    a("s_add_u32 s9, s9, %d" % WS_Q)
    a("v_lshlrev_b32 v9, 1, v2")
    a("v_cmp_gt_u32 vcc, 16, v2")
    a("s_and_saveexec_b64 s[40:41], vcc")
    lq = a.label("L_q")
    a("s_cbranch_execz %s" % lq)
    a("s_cmp_lg_u32 s5, 0")
    a("s_cbranch_scc1 %s" % lq)
    a("buffer_store_short v%d, v9, %s, s9 offen sc1" % (T, S(SWS)))
    a("%s:" % lq)
    a("s_mov_b64 exec, s[40:41]")
    H = T + 10
    a("v_cvt_pk_bf16_f32 v%d, v%d, v%d" % (T + 4, T + 4, T + 4))
    a("v_and_b32 v%d, 0xffff0000, v%d" % (T + 4, T + 4))
    a("s_nop 1")
    a("v_mov_b32_dpp v%d, v%d row_ror:8 row_mask:0xf bank_mask:0xf" % (T + 5, T + 4))
    k0 = 0.7978845608028654; k1 = 0.044715
    a("v_mul_f32 v%d, v%d, v%d" % (T + 6, T + 4, T + 4))
    a("v_mul_f32 v%d, v%d, v%d" % (T + 6, T + 6, T + 4))
    a("v_mul_f32 v%d, 0x%x, v%d" % (T + 6, f2u(k1), T + 6))
    a("v_add_f32 v%d, v%d, v%d" % (T + 6, T + 6, T + 4))
    a("v_mul_f32 v%d, 0x%x, v%d" % (T + 6, f2u(-2 * k0 * LOG2E), T + 6))
    a("v_exp_f32 v%d, v%d" % (T + 6, T + 6))
    a("s_nop 0")
    a("v_add_f32 v%d, 1.0, v%d" % (T + 6, T + 6))
    a("v_rcp_f32 v%d, v%d" % (T + 6, T + 6))
    a("s_nop 0")
    a("v_mul_f32 v%d, v%d, v%d" % (T + 6, T + 6, T + 4))
    rbf(T + 6)
    a("v_mul_f32 v%d, v%d, v%d" % (H, T + 6, T + 5))
    rbf(H)
    def grid_barrier(idx):
        a("s_waitcnt vmcnt(0) lgkmcnt(0)")
        a("s_barrier")
        lb = a.label("L_gb")
        a("s_cmp_lg_u32 s5, 0")
        a("s_cbranch_scc1 %s_done" % lb)
        a("v_mov_b32 v3, %d" % (idx * 64))
        a("v_mov_b32 v4, 1")
        a("s_mov_b64 s[42:43], exec")
        a("s_mov_b64 exec, 1")
        a("global_atomic_add v3, v4, s[36:37] sc1")
        a("s_mov_b32 s44, 0")
        a("%s:" % lb)
        a("global_load_dword v4, v3, s[36:37] sc1")
        a("s_waitcnt vmcnt(0)")
        a("v_readfirstlane_b32 s45, v4")
        a("s_cmp_ge_u32 s45, 256")
        a("s_cbranch_scc1 %s_ok" % lb)
        a("s_add_u32 s44, s44, 1")
        a("s_cmp_lt_u32 s44, 200000")
        a("s_sleep 1")
        a("s_cbranch_scc1 %s" % lb)
        a("%s_ok:" % lb)
        a("s_mov_b64 exec, s[42:43]")
        a("%s_done:" % lb)
        a("s_barrier")
    grid_barrier(0)
    QB = T + 12
    a("v_and_b32 v4, 15, v2")
    a("v_lshrrev_b32 v4, 3, v4")
    a("v_lshlrev_b32 v4, 8, v4")
    a("v_lshrrev_b32 v9, 4, v2")
    a("v_lshlrev_b32 v9, 4, v9")
    a("v_add_u32 v4, v4, v9")
    a("s_lshl_b32 s9, s3, 10")
    a("s_add_u32 s9, s9, %d" % WS_Q)
    for half in range(2):
        for i in range(4):
            r = QB + 16 * half + 4 * i
            a("buffer_load_dwordx4 v[%d:%d], v4, %s, s9 offen offset:%d sc1" % (r, r + 3, S(SWS), half * 512 + i * 64))
    a("s_waitcnt vmcnt(0)")
    SC = QB + 32
    for half in range(2):
        for t in range(2):
            d = SC + 8 * half + 4 * t
            for i in range(4):
                c = "0" if i == 0 else "v[%d:%d]" % (d, d + 3)
                a("v_mfma_f32_16x16x32_bf16 v[%d:%d], v[%d:%d], v[%d:%d], %s" % (d, d + 3, VK + 16 * t + 4 * i, VK + 16 * t + 4 * i + 3, QB + 16 * half + 4 * i, QB + 16 * half + 4 * i + 3, c))
    a("s_nop 7")
    a("s_nop 1")
    SCALE = f2u(128 ** -0.5)
    for k in range(16):
        rbf(SC + k)
        a("v_mul_f32 v%d, 0x%x, v%d" % (SC + k, SCALE, SC + k))
        rbf(SC + k)
    MX = SC + 16
    for half in range(2):
        b = SC + 8 * half
        a("v_max3_f32 v%d, v%d, v%d, v%d" % (MX + half, b, b + 1, b + 2))
        a("v_max3_f32 v%d, v%d, v%d, v%d" % (MX + half, MX + half, b + 3, b + 4))
        a("v_max3_f32 v%d, v%d, v%d, v%d" % (MX + half, MX + half, b + 5, b + 6))
        a("v_max_f32 v%d, v%d, v%d" % (MX + half, MX + half, b + 7))
    TM = MX + 2
    for half in range(2):
        v = MX + half
        a("v_mov_b32 v%d, v%d" % (TM, v))
        a("s_nop 1")
        a("v_permlane16_swap_b32 v%d, v%d" % (v, TM))
        a("s_nop 1")
        a("v_max_f32 v%d, v%d, v%d" % (v, v, TM))
        a("v_mov_b32 v%d, v%d" % (TM, v))
        a("s_nop 1")
        a("v_permlane32_swap_b32 v%d, v%d" % (v, TM))
        a("s_nop 1")
        a("v_max_f32 v%d, v%d, v%d" % (v, v, TM))
    LM = 2560
    LL = 2624
    a("v_and_b32 v4, 15, v2")
    a("v_lshrrev_b32 v9, 3, v4")
    a("s_lshl_b32 s9, s5, 2")
    a("v_add_u32 v3, s9, v9")
    a("v_lshlrev_b32 v3, 2, v3")
    a("v_and_b32 v4, 55, v2")
    a("v_cmp_eq_u32 vcc, 0, v4")
    a("s_and_saveexec_b64 s[40:41], vcc")
    a("ds_write_b32 v3, v%d offset:%d" % (MX, LM))
    a("ds_write_b32 v3, v%d offset:%d" % (MX + 1, LM + 8))
    a("s_mov_b64 exec, s[40:41]")
    a("s_waitcnt lgkmcnt(0)")
    a("s_barrier")
    a("v_lshlrev_b32 v4, 2, v9")
    for half in range(2):
        for wv in range(4):
            a("ds_read_b32 v%d, v4 offset:%d" % (TM + 4 * half + wv, LM + 16 * wv + 8 * half))
    a("s_waitcnt lgkmcnt(0)")
    for half in range(2):
        b = TM + 4 * half
        a("v_max3_f32 v%d, v%d, v%d, v%d" % (MX + half, b, b + 1, b + 2))
        a("v_max_f32 v%d, v%d, v%d" % (MX + half, MX + half, b + 3))
    LS = TM
    for half in range(2):
        for k in range(8):
            r = SC + 8 * half + k
            a("v_sub_f32 v%d, v%d, v%d" % (r, r, MX + half))
            a("v_mul_f32 v%d, 0x%x, v%d" % (r, f2u(LOG2E), r))
            a("v_exp_f32 v%d, v%d" % (r, r))
        a("s_nop 0")
        b = SC + 8 * half
        a("v_add_f32 v%d, v%d, v%d" % (LS + half, b, b + 1))
        for k in range(2, 8):
            a("v_add_f32 v%d, v%d, v%d" % (LS + half, LS + half, b + k))
    TL = LS + 2
    for half in range(2):
        v = LS + half
        a("v_mov_b32 v%d, v%d" % (TL, v))
        a("s_nop 1")
        a("v_permlane16_swap_b32 v%d, v%d" % (v, TL))
        a("s_nop 1")
        a("v_add_f32 v%d, v%d, v%d" % (v, v, TL))
        a("v_mov_b32 v%d, v%d" % (TL, v))
        a("s_nop 1")
        a("v_permlane32_swap_b32 v%d, v%d" % (v, TL))
        a("s_nop 1")
        a("v_add_f32 v%d, v%d, v%d" % (v, v, TL))
    a("v_and_b32 v4, 55, v2")
    a("v_cmp_eq_u32 vcc, 0, v4")
    a("s_and_saveexec_b64 s[40:41], vcc")
    a("ds_write_b32 v3, v%d offset:%d" % (LS, LL))
    a("ds_write_b32 v3, v%d offset:%d" % (LS + 1, LL + 8))
    a("s_mov_b64 exec, s[40:41]")
    MK = TL + 2
    a("v_and_b32 v4, 7, v2")
    a("v_and_b32 v3, 1, v4")
    a("v_lshlrev_b32 v3, 4, v3")
    a("v_mov_b32 v%d, 0xffff" % (MK + 3))
    a("v_lshlrev_b32 v3, v3, v%d" % (MK + 3))
    a("v_lshrrev_b32 v4, 1, v4")
    for r in range(4):
        a("v_cmp_eq_u32 vcc, %d, v4" % r)
        a("s_nop 1")
        a("v_cndmask_b32 v%d, 0, v3, vcc" % (MK + r))
    OA = MK + 4
    AO = OA + 8
    first = {0: True, 1: True}
    n = 0
    for t in range(2):
        for r in range(4):
            for half in range(2):
                p = SC + 8 * half + 4 * t + r
                ao = AO + 4 * (n & 1); n += 1
                a("v_cvt_pk_bf16_f32 v%d, v%d, v%d" % (ao + 3, p, p))
                for k in range(3):
                    a("v_and_b32 v%d, v%d, v%d" % (ao + k, ao + 3, MK + k))
                a("v_and_b32 v%d, v%d, v%d" % (ao + 3, ao + 3, MK + 3))
                a("s_nop 1")
                d = OA + 4 * half
                c = "0" if first[half] else "v[%d:%d]" % (d, d + 3)
                first[half] = False
                vv = VV + 16 * t + 4 * r
                a("v_mfma_f32_16x16x32_bf16 v[%d:%d], v[%d:%d], v[%d:%d], %s" % (d, d + 3, ao, ao + 3, vv, vv + 3, c))
    a("s_nop 7")
    a("s_nop 1")
    LO = 4096
    a("v_lshrrev_b32 v4, 5, v2")
    a("v_lshlrev_b32 v4, 9, v4")
    a("v_and_b32 v3, 15, v2")
    a("v_lshlrev_b32 v3, 5, v3")
    a("v_add_u32 v4, v4, v3")
    a("v_bfe_u32 v3, v2, 4, 1")
    a("v_lshlrev_b32 v3, 4, v3")
    a("v_add_u32 v4, v4, v3")
    a("s_lshl_b32 s9, s5, 11")
    a("v_add_u32 v4, s9, v4")
    a("ds_write_b128 v4, v[%d:%d] offset:%d" % (OA, OA + 3, LO))
    a("ds_write_b128 v4, v[%d:%d] offset:%d" % (OA + 4, OA + 7, LO + 1024))
    a("s_waitcnt lgkmcnt(0)")
    a("s_barrier")
    a("v_lshlrev_b32 v4, 3, v0")
    for wv in range(4):
        a("ds_read_b64 v[%d:%d], v4 offset:%d" % (OA + 2 * wv, OA + 2 * wv + 1, LO + 2048 * wv))
    a("v_and_b32 v3, 3, v0")
    a("v_lshlrev_b32 v3, 2, v3")
    for wv in range(4):
        a("ds_read_b32 v%d, v3 offset:%d" % (AO + wv, LL + 16 * wv))
    a("ds_read_b32 v%d, v3 offset:%d" % (AO + 4, LM))
    a("ds_read_b32 v%d, v3 offset:%d" % (AO + 5, LM + 16))
    a("ds_read_b32 v%d, v3 offset:%d" % (AO + 6, LM + 32))
    a("ds_read_b32 v%d, v3 offset:%d" % (AO + 7, LM + 48))
    a("s_waitcnt lgkmcnt(0)")
    a("v_pk_add_f32 v[%d:%d], v[%d:%d], v[%d:%d]" % (OA, OA + 1, OA, OA + 1, OA + 2, OA + 3))
    a("v_pk_add_f32 v[%d:%d], v[%d:%d], v[%d:%d]" % (OA + 4, OA + 5, OA + 4, OA + 5, OA + 6, OA + 7))
    a("v_pk_add_f32 v[%d:%d], v[%d:%d], v[%d:%d]" % (OA, OA + 1, OA, OA + 1, OA + 4, OA + 5))
    a("v_add_f32 v%d, v%d, v%d" % (AO, AO, AO + 1))
    a("v_add_f32 v%d, v%d, v%d" % (AO + 2, AO + 2, AO + 3))
    a("v_add_f32 v%d, v%d, v%d" % (AO + 1, AO, AO + 2))
    a("v_max3_f32 v%d, v%d, v%d, v%d" % (AO, AO + 4, AO + 5, AO + 6))
    a("v_max_f32 v%d, v%d, v%d" % (AO, AO, AO + 7))
    a("s_lshl_b32 s9, s3, 5")
    a("s_add_u32 s9, s9, s4")
    a("s_lshl_b32 s14, s9, 11")
    a("s_add_u32 s14, s14, %d" % WS_O)
    a("buffer_store_dwordx2 v[%d:%d], v4, %s, s14 offen sc1" % (OA, OA + 1, S(SWS))) if False else None
    a("v_lshlrev_b32 v4, 3, v0")
    a("buffer_store_dwordx2 v[%d:%d], v4, %s, s14 offen sc1" % (OA, OA + 1, S(SWS)))
    a("s_lshl_b32 s14, s9, 5")
    a("s_add_u32 s14, s14, %d" % WS_ML)
    a("v_lshlrev_b32 v4, 3, v0")
    a("v_cmp_gt_u32 vcc, 4, v0")
    a("s_and_saveexec_b64 s[40:41], vcc")
    lq = a.label("L_ml")
    a("s_cbranch_execz %s" % lq)
    a("buffer_store_dwordx2 v[%d:%d], v4, %s, s14 offen sc1" % (AO, AO + 1, S(SWS)))
    a("%s:" % lq)
    a("s_mov_b64 exec, s[40:41]")
    grid_barrier(1)
    a("s_lshr_b32 s6, s2, 5")
    a("s_lshr_b32 s7, s2, 3")
    a("s_and_b32 s7, s7, 3")
    a("s_and_b32 s8, s2, 7")
    a("v_and_b32 v3, 31, v2")
    a("v_lshlrev_b32 v4, 5, v3")
    a("s_lshl_b32 s9, s6, 10")
    a("s_lshl_b32 s14, s7, 3")
    a("s_add_u32 s9, s9, s14")
    a("s_add_u32 s9, s9, %d" % WS_ML)
    C = T + 12
    a("buffer_load_dwordx2 v[%d:%d], v4, %s, s9 offen sc1" % (C, C + 1, S(SWS)))
    a("v_lshlrev_b32 v4, 11, v3")
    a("v_lshrrev_b32 v9, 5, v2")
    a("v_lshlrev_b32 v9, 3, v9")
    a("v_add_u32 v4, v4, v9")
    a("s_lshl_b32 s9, s6, 16")
    a("s_lshl_b32 s14, s7, 9")
    a("s_add_u32 s9, s9, s14")
    a("s_lshl_b32 s14, s8, 6")
    a("s_add_u32 s9, s9, s14")
    a("s_lshl_b32 s14, s5, 4")
    a("s_add_u32 s9, s9, s14")
    a("s_add_u32 s9, s9, %d" % WS_O)
    a("buffer_load_dwordx2 v[%d:%d], v4, %s, s9 offen sc1" % (C + 2, C + 3, S(SWS)))
    a("s_waitcnt vmcnt(0)")
    a("v_mov_b32 v%d, v%d" % (C + 4, C))
    allreduce("v_max_f32", C + 4, C + 5)
    a("v_sub_f32 v%d, v%d, v%d" % (C, C, C + 4))
    a("v_mul_f32 v%d, 0x%x, v%d" % (C, f2u(LOG2E), C))
    a("v_exp_f32 v%d, v%d" % (C, C))
    a("s_nop 0")
    a("v_mul_f32 v%d, v%d, v%d" % (C + 1, C + 1, C))
    a("v_mul_f32 v%d, v%d, v%d" % (C + 2, C + 2, C))
    a("v_mul_f32 v%d, v%d, v%d" % (C + 3, C + 3, C))
    for r in (C + 1, C + 2, C + 3):
        for rot in (8, 4, 2, 1):
            a("s_nop 1")
            a("v_add_f32_dpp v%d, v%d, v%d row_ror:%d row_mask:0xf bank_mask:0xf" % (r, r, r, rot))
        a("v_mov_b32 v%d, v%d" % (C + 5, r))
        a("s_nop 1")
        a("v_permlane16_swap_b32 v%d, v%d" % (r, C + 5))
        a("s_nop 1")
        a("v_add_f32 v%d, v%d, v%d" % (r, r, C + 5))
    a("v_rcp_f32 v%d, v%d" % (C + 1, C + 1))
    a("s_nop 0")
    a("v_mul_f32 v%d, v%d, v%d" % (C + 2, C + 2, C + 1))
    a("v_mul_f32 v%d, v%d, v%d" % (C + 3, C + 3, C + 1))
    rbf(C + 2); rbf(C + 3)
    a("s_nop 0")
    a("v_readlane_b32 s46, v%d, 0" % (C + 2))
    a("v_readlane_b32 s47, v%d, 0" % (C + 3))
    a("v_readlane_b32 s48, v%d, 32" % (C + 2))
    a("v_readlane_b32 s49, v%d, 32" % (C + 3))
    a("s_lshl_b32 s9, s5, 1")
    a("s_nop 3")
    a("v_readlane_b32 s50, v%d, s9" % H)
    a("s_add_u32 s9, s9, 1")
    a("s_nop 3")
    a("v_readlane_b32 s51, v%d, s9" % H)
    a("s_cmp_ge_u32 s4, 28")
    a("s_cselect_b32 s50, 0, s50")
    a("s_cselect_b32 s51, 0, s51")
    PA = C + 8
    W8b = PA + 8
    a("s_nop 1")
    for i in range(4):
        unpack(W8b, VWO + 4 * i, 4)
        for k in range(8):
            if i == 0:
                a("v_mul_f32 v%d, s%d, v%d" % (PA + k, 46 + i, W8b + k))
            else:
                a("v_fma_f32 v%d, s%d, v%d, v%d" % (PA + k, 46 + i, W8b + k, PA + k))
    for i in range(2):
        unpack(W8b, VD + 4 * i, 4)
        for k in range(8):
            a("v_fma_f32 v%d, s%d, v%d, v%d" % (PA + k, 50 + i, W8b + k, PA + k))
    LP = 4096
    a("s_barrier")
    a("v_lshlrev_b32 v4, 5, v2")
    a("s_lshl_b32 s9, s5, 11")
    a("v_add_u32 v4, s9, v4")
    a("ds_write_b128 v4, v[%d:%d] offset:%d" % (PA, PA + 3, LP))
    a("ds_write_b128 v4, v[%d:%d] offset:%d" % (PA + 4, PA + 7, LP + 16))
    a("s_waitcnt lgkmcnt(0)")
    a("s_barrier")
    a("v_lshlrev_b32 v4, 3, v0")
    for wv in range(4):
        a("ds_read_b64 v[%d:%d], v4 offset:%d" % (PA + 2 * wv, PA + 2 * wv + 1, LP + 2048 * wv))
    a("s_waitcnt lgkmcnt(0)")
    a("v_pk_add_f32 v[%d:%d], v[%d:%d], v[%d:%d]" % (PA, PA + 1, PA, PA + 1, PA + 2, PA + 3))
    a("v_pk_add_f32 v[%d:%d], v[%d:%d], v[%d:%d]" % (PA + 4, PA + 5, PA + 4, PA + 5, PA + 6, PA + 7))
    a("v_pk_add_f32 v[%d:%d], v[%d:%d], v[%d:%d]" % (PA, PA + 1, PA, PA + 1, PA + 4, PA + 5))
    a("s_lshl_b32 s14, s2, 11")
    a("s_add_u32 s14, s14, %d" % WS_P)
    a("buffer_store_dwordx2 v[%d:%d], v4, %s, s14 offen sc1" % (PA, PA + 1, S(SWS)))
    grid_barrier(2)
    a("s_cmp_ge_u32 s2, 8")
    a("s_cbranch_scc1 L_end")
    F = T
    a("v_lshlrev_b32 v4, 2, v2")
    a("s_lshl_b32 s9, s2, 8")
    a("s_lshl_b32 s14, s5, 17")
    a("s_add_u32 s9, s9, s14")
    a("s_add_u32 s9, s9, %d" % WS_P)
    for half in range(2):
        for i in range(32):
            a("s_add_u32 s14, s9, %d" % ((half * 32 + i) * 2048))
            a("buffer_load_dword v%d, v4, %s, s14 offen sc1" % (F + i, S(SWS)))
        a("s_waitcnt vmcnt(0)")
        if half == 0:
            a("v_mov_b32 v%d, v%d" % (F + 40, F))
        else:
            a("v_add_f32 v%d, v%d, v%d" % (F + 40, F + 40, F))
        for i in range(1, 32):
            a("v_add_f32 v%d, v%d, v%d" % (F + 40, F + 40, F + i))
    a("v_lshlrev_b32 v4, 2, v0")
    a("ds_write_b32 v4, v%d offset:0" % (F + 40))
    a("s_lshl_b32 s9, s2, 7")
    a("v_lshlrev_b32 v3, 1, v2")
    a("buffer_load_ushort v%d, v3, %s, s9 offen" % (F + 41, S(SX)))
    a("s_waitcnt lgkmcnt(0)")
    a("s_barrier")
    a("v_lshlrev_b32 v4, 2, v2")
    for wv in range(4):
        a("ds_read_b32 v%d, v4 offset:%d" % (F + wv, 256 * wv))
    a("s_waitcnt vmcnt(0) lgkmcnt(0)")
    a("v_add_f32 v%d, v%d, v%d" % (F, F, F + 1))
    a("v_add_f32 v%d, v%d, v%d" % (F + 2, F + 2, F + 3))
    a("v_add_f32 v%d, v%d, v%d" % (F, F, F + 2))
    a("v_lshlrev_b32 v%d, 16, v%d" % (F + 41, F + 41))
    a("v_add_f32 v%d, v%d, v%d" % (F, F, F + 41))
    a("v_cvt_pk_bf16_f32 v%d, v%d, v%d" % (F, F, F))
    srd(SK, 34, 1024)
    a("s_cmp_lg_u32 s5, 0")
    a("s_cbranch_scc1 L_end")
    a("buffer_store_short v%d, v3, %s, s9 offen" % (F, S(SK)))
    a("L_end:")
    return wrap(a.text(), 256, 256, 16384, 256, 102)

if __name__ == "__main__":
    open(sys.argv[1] if len(sys.argv) > 1 else "v1.s", "w").write(gen())
```

```python
import sys
from asmgen import *

LOG2E = 1.4426950408889634
import struct
def f2u(f):
    return struct.unpack("<I", struct.pack("<f", f))[0]

def gen(nt=True, stamps=False):
    a = Asm()
    NT = " nt" if nt else ""
    SK, SV, SWQ, SWO, SG, SU, SD, SWS, SX = 64, 68, 72, 76, 80, 84, 88, 92, 96
    a("s_cmp_ge_u32 s2, 256")
    a("s_cbranch_scc1 L_end")
    if stamps: a("s_memrealtime s[52:53]")
    a("s_load_dwordx16 s[16:31], s[0:1], 0")
    a("s_load_dwordx8 s[32:39], s[0:1], 64")
    a("v_lshrrev_b32 v1, 6, v0")
    a("v_and_b32 v2, 63, v0")
    a("s_and_b32 s3, s2, 7")
    a("s_lshr_b32 s4, s2, 3")
    a("s_nop 0")
    a("v_readfirstlane_b32 s5, v1")
    a("s_waitcnt lgkmcnt(0)")
    def srd(dst, ptr, size):
        a("s_mov_b32 s%d, s%d" % (dst, ptr))
        a("s_and_b32 s%d, s%d, 0xffff" % (dst + 1, ptr + 1))
        a("s_mov_b32 s%d, 0x%x" % (dst + 2, size))
        a("s_mov_b32 s%d, 0x20000" % (dst + 3))
    srd(SK, 18, 134217728); srd(SV, 20, 134217728); srd(SWQ, 22, 4194304); srd(SWO, 24, 4194304)
    srd(SG, 28, 1835008); srd(SU, 30, 1835008); srd(SD, 32, 1835008); srd(SWS, 38, 536870912)
    srd(SX, 16, 1024)
    def S(b): return "s[%d:%d]" % (b, b + 3)
    VX = 12
    VWQ = 16
    VG = 32
    VU = 40
    VK = 48
    VV = 80
    VWO = 112
    VD = 128
    T = 136
    a("v_lshlrev_b32 v7, 4, v2")
    a("buffer_load_dwordx4 v[%d:%d], v7, %s, 0 offen" % (VX, VX + 3, S(SX)))
    a("v_lshrrev_b32 v3, 1, v2")
    a("v_lshlrev_b32 v3, 13, v3")
    a("v_and_b32 v4, 1, v2")
    a("v_lshlrev_b32 v4, 4, v4")
    a("v_add_u32 v3, v3, v4")
    a("s_lshl_b32 s6, s3, 10")
    a("s_lshl_b32 s7, s4, 5")
    a("s_add_u32 s6, s6, s7")
    a("s_lshl_b32 s7, s5, 20")
    a("s_add_u32 s6, s6, s7")
    for i in range(4):
        a("s_add_u32 s14, s6, %d" % (i * 32 * 8192))
        a("buffer_load_dwordx4 v[%d:%d], v3, %s, s14 offen%s" % (VWQ + 4 * i, VWQ + 4 * i + 3, S(SWQ), NT))
    a("v_mul_u32_u24 v8, 3584, v2")
    a("s_mul_i32 s15, s3, 28")
    a("s_add_u32 s15, s15, s4")
    a("s_lshl_b32 s11, s15, 4")
    a("s_mul_i32 s12, s5, %d" % (128 * 3584))
    a("s_add_u32 s11, s11, s12")
    a("s_cmp_ge_u32 s4, 28")
    a("s_cselect_b32 s11, 0x7f000000, s11")
    a("v_mov_b32 v9, 0x7f000000")
    a("s_cselect_b32 s13, 1, 0")
    a("v_mov_b32 v10, s13")
    a("v_cmp_eq_u32 vcc, 1, v10")
    a("s_nop 1")
    a("v_cndmask_b32 v8, v8, v9, vcc")
    a("s_cmp_ge_u32 s4, 28")
    a("s_cselect_b32 s11, 0, s11")
    for mi, (m, r0) in enumerate(((SG, VG), (SU, VU))):
        for i in range(2):
            a("s_add_u32 s14, s11, %d" % (i * 64 * 3584))
            a("buffer_load_dwordx4 v[%d:%d], v8, %s, s14 offen%s" % (r0 + 4 * i, r0 + 4 * i + 3, S(m), NT))
    a("s_lshl_b32 s8, s3, 24")
    a("s_lshl_b32 s9, s4, 15")
    a("s_add_u32 s8, s8, s9")
    a("s_add_u32 s8, s8, %d" % (61440 * 256))
    a("s_lshl_b32 s9, s5, 13")
    a("s_add_u32 s8, s8, s9")
    a("v_and_b32 v5, 15, v2")
    a("v_lshlrev_b32 v5, 8, v5")
    a("v_lshrrev_b32 v6, 4, v2")
    a("v_lshlrev_b32 v6, 4, v6")
    a("v_add_u32 v5, v5, v6")
    a("v_lshrrev_b32 v6, 4, v2")
    a("v_lshlrev_b32 v6, 10, v6")
    a("v_and_b32 v4, 15, v2")
    a("v_lshlrev_b32 v4, 4, v4")
    a("v_add_u32 v6, v6, v4")
    for t in range(2):
        a("s_add_u32 s14, s8, %d" % (t * 4096))
        for i in range(4):
            r = VK + 16 * t + 4 * i
            a("buffer_load_dwordx4 v[%d:%d], v5, %s, s14 offen offset:%d%s" % (r, r + 3, S(SK), i * 64, NT))
    for t in range(2):
        a("s_add_u32 s14, s8, %d" % (t * 4096))
        for i in range(4):
            r = VV + 16 * t + 4 * i
            a("buffer_load_dwordx4 v[%d:%d], v6, %s, s14 offen offset:%d%s" % (r, r + 3, S(SV), i * 256, NT))
    a("s_lshl_b32 s10, s2, 14")
    a("s_lshl_b32 s9, s5, 12")
    a("s_add_u32 s10, s10, s9")
    for i in range(4):
        a("buffer_load_dwordx4 v[%d:%d], v7, %s, s10 offen offset:%d%s" % (VWO + 4 * i, VWO + 4 * i + 3, S(SWO), i * 1024, NT))
    a("s_lshl_b32 s12, s15, 13")
    a("s_lshl_b32 s9, s5, 11")
    a("s_add_u32 s12, s12, s9")
    a("v_mov_b32 v11, v7")
    a("v_cndmask_b32 v11, v11, v9, vcc")
    a("s_cmp_ge_u32 s4, 28")
    a("s_cselect_b32 s12, 0, s12")
    for i in range(2):
        a("buffer_load_dwordx4 v[%d:%d], v11, %s, s12 offen offset:%d%s" % (VD + 4 * i, VD + 4 * i + 3, S(SD), i * 1024, NT))
    def unpack(dst, src, n):
        for k in range(n):
            a("v_lshlrev_b32 v%d, 16, v%d" % (dst + 2 * k, src + k))
            a("v_and_b32 v%d, 0xffff0000, v%d" % (dst + 2 * k + 1, src + k))
    def allreduce(op, v, t):
        for rot in (8, 4, 2, 1):
            a("s_nop 1")
            a("%s_dpp v%d, v%d, v%d row_ror:%d row_mask:0xf bank_mask:0xf" % (op, v, v, v, rot))
        a("v_mov_b32 v%d, v%d" % (t, v))
        a("s_nop 1")
        a("v_permlane16_swap_b32 v%d, v%d" % (v, t))
        a("s_nop 1")
        a("%s v%d, v%d, v%d" % (op, v, v, t))
        a("v_mov_b32 v%d, v%d" % (t, v))
        a("s_nop 1")
        a("v_permlane32_swap_b32 v%d, v%d" % (v, t))
        a("s_nop 1")
        a("%s v%d, v%d, v%d" % (op, v, v, t))
    def rbf(v):
        a("v_cvt_pk_bf16_f32 v%d, v%d, v%d" % (v, v, v))
        a("v_and_b32 v%d, 0xffff0000, v%d" % (v, v))
    a("s_waitcnt vmcnt(30)")
    XF = T
    unpack(XF, VX, 4)
    a("v_add_f32 v%d, v%d, v%d" % (T + 8, XF, XF + 1))
    for k in range(2, 8):
        a("v_add_f32 v%d, v%d, v%d" % (T + 8, T + 8, XF + k))
    allreduce("v_add_f32", T + 8, T + 9)
    a("v_mul_f32 v%d, 0x%x, v%d" % (T + 8, f2u(1.0 / 512), T + 8))
    for k in range(8):
        a("v_sub_f32 v%d, v%d, v%d" % (T + 10 + k, XF + k, T + 8))
    a("v_mul_f32 v%d, v%d, v%d" % (T + 9, T + 10, T + 10))
    for k in range(1, 8):
        a("v_fmac_f32 v%d, v%d, v%d" % (T + 9, T + 10 + k, T + 10 + k))
    allreduce("v_add_f32", T + 9, T + 18)
    a("v_mul_f32 v%d, 0x%x, v%d" % (T + 9, f2u(1.0 / 512), T + 9))
    rbf(T + 8)
    rbf(T + 9)
    a("v_add_f32 v%d, 0x%x, v%d" % (T + 9, f2u(1e-5), T + 9))
    rbf(T + 9)
    a("v_sqrt_f32 v%d, v%d" % (T + 9, T + 9))
    a("s_nop 0")
    rbf(T + 9)
    a("v_rcp_f32 v%d, v%d" % (T + 9, T + 9))
    for k in range(8):
        a("v_sub_f32 v%d, v%d, v%d" % (XF + k, XF + k, T + 8))
        rbf(XF + k)
        a("v_mul_f32 v%d, v%d, v%d" % (XF + k, XF + k, T + 9))
        rbf(XF + k)
    LXN = 0
    a("v_lshlrev_b32 v4, 5, v2")
    a("ds_write_b128 v4, v[%d:%d] offset:%d" % (XF, XF + 3, LXN))
    a("ds_write_b128 v4, v[%d:%d] offset:%d" % (XF + 4, XF + 7, LXN + 16))
    a("s_waitcnt lgkmcnt(0)")
    a("v_lshrrev_b32 v4, 1, v2")
    a("s_lshl_b32 s9, s5, 7")
    a("v_add_u32 v4, s9, v4")
    a("v_lshlrev_b32 v4, 2, v4")
    for i in range(4):
        a("ds_read_b32 v%d, v4 offset:%d" % (T + 20 + i, LXN + i * 128))
    a("v_add_u32 v9, s9, v2")
    a("v_lshlrev_b32 v9, 2, v9")
    for i in range(2):
        a("ds_read_b32 v%d, v9 offset:%d" % (T + 24 + i, LXN + i * 256))
    ACC = T + 28
    W8 = T + 8
    a("s_waitcnt vmcnt(26) lgkmcnt(0)")
    for i in range(4):
        unpack(W8, VWQ + 4 * i, 4)
        for k in range(8):
            if i == 0:
                a("v_mul_f32 v%d, v%d, v%d" % (ACC + k, W8 + k, T + 20 + i))
            else:
                a("v_fmac_f32 v%d, v%d, v%d" % (ACC + k, W8 + k, T + 20 + i))
    def reduce_accs(accs, rots):
        l1 = []
        a("s_nop 1")
        for k in range(0, len(accs), 2):
            a("v_permlane32_swap_b32 v%d, v%d" % (accs[k], accs[k + 1]))
        a("s_nop 1")
        for k in range(0, len(accs), 2):
            a("v_add_f32 v%d, v%d, v%d" % (accs[k], accs[k], accs[k + 1]))
            l1.append(accs[k])
        a("s_nop 1")
        l2 = []
        for k in range(0, len(l1), 2):
            a("v_permlane16_swap_b32 v%d, v%d" % (l1[k], l1[k + 1]))
        a("s_nop 1")
        for k in range(0, len(l1), 2):
            a("v_add_f32 v%d, v%d, v%d" % (l1[k], l1[k], l1[k + 1]))
            l2.append(l1[k])
        for rot in rots:
            a("s_nop 1")
            for r in l2:
                if rot == "x2":
                    a("v_add_f32_dpp v%d, v%d, v%d quad_perm:[2,3,0,1] row_mask:0xf bank_mask:0xf" % (r, r, r))
                else:
                    a("v_add_f32_dpp v%d, v%d, v%d row_ror:%d row_mask:0xf bank_mask:0xf" % (r, r, r, rot))
        return l2
    qr = reduce_accs([ACC + k for k in range(8)], [8, 4, "x2"])
    LQP = 2048
    LGP = 2304
    a("v_lshrrev_b32 v9, 4, v2")
    a("v_and_b32 v10, 1, v9")
    a("v_lshlrev_b32 v10, 1, v10")
    a("v_lshrrev_b32 v9, 1, v9")
    a("v_or_b32 v10, v10, v9")
    a("v_and_b32 v9, 1, v2")
    a("v_lshlrev_b32 v9, 3, v9")
    a("v_add_u32 v9, v9, v10")
    a("s_lshl_b32 s9, s5, 4")
    a("v_add_u32 v9, s9, v9")
    a("v_lshlrev_b32 v9, 2, v9")
    a("v_and_b32 v4, 15, v2")
    a("v_cmp_gt_u32 vcc, 2, v4")
    a("s_and_saveexec_b64 s[40:41], vcc")
    a("ds_write_b32 v9, v%d offset:%d" % (qr[0], LQP))
    a("ds_write_b32 v9, v%d offset:%d" % (qr[1], LQP + 16))
    a("s_mov_b64 exec, s[40:41]")
    AG = T + 28
    a("s_waitcnt vmcnt(22)")
    for mi, r0 in enumerate((VG, VU)):
        for i in range(2):
            unpack(W8, r0 + 4 * i, 4)
            for k in range(8):
                if i == 0:
                    a("v_mul_f32 v%d, v%d, v%d" % (AG + 8 * mi + k, W8 + k, T + 24 + i))
                else:
                    a("v_fmac_f32 v%d, v%d, v%d" % (AG + 8 * mi + k, W8 + k, T + 24 + i))
    gr = reduce_accs([AG + k for k in range(16)], [8, 4, 2, 1])
    a("s_lshl_b32 s9, s5, 4")
    a("v_add_u32 v9, s9, v10")
    a("v_lshlrev_b32 v9, 2, v9")
    a("v_and_b32 v4, 15, v2")
    a("v_cmp_eq_u32 vcc, 0, v4")
    a("s_and_saveexec_b64 s[40:41], vcc")
    for m in range(4):
        a("ds_write_b32 v9, v%d offset:%d" % (gr[m], LGP + 16 * m))
    a("s_mov_b64 exec, s[40:41]")
    a("s_waitcnt lgkmcnt(0)")
    a("s_barrier")
    a("v_and_b32 v4, 15, v2")
    a("v_lshlrev_b32 v4, 2, v4")
    for wv in range(4):
        a("ds_read_b32 v%d, v4 offset:%d" % (T + wv, LQP + 64 * wv))
        a("ds_read_b32 v%d, v4 offset:%d" % (T + 4 + wv, LGP + 64 * wv))
    a("s_waitcnt lgkmcnt(0)")
    a("v_add_f32 v%d, v%d, v%d" % (T, T, T + 1))
    a("v_add_f32 v%d, v%d, v%d" % (T + 2, T + 2, T + 3))
    a("v_add_f32 v%d, v%d, v%d" % (T, T, T + 2))
    a("v_add_f32 v%d, v%d, v%d" % (T + 4, T + 4, T + 5))
    a("v_add_f32 v%d, v%d, v%d" % (T + 6, T + 6, T + 7))
    a("v_add_f32 v%d, v%d, v%d" % (T + 4, T + 4, T + 6))
    WS_Q = 0x10000
    WS_O = 0x20000
    WS_ML = 0xC0000
    WS_P = 0x100000
    a("v_cvt_pk_bf16_f32 v%d, v%d, v%d" % (T, T, T))
    a("s_lshl_b32 s9, s3, 10")
    a("s_lshl_b32 s14, s4, 5")
    a("s_add_u32 s9, s9, s14")
    a("s_add_u32 s9, s9, %d" % WS_Q)
    a("v_lshlrev_b32 v9, 1, v2")
    a("v_cmp_gt_u32 vcc, 16, v2")
    a("s_and_saveexec_b64 s[40:41], vcc")
    lq = a.label("L_q")
    a("s_cbranch_execz %s" % lq)
    a("s_cmp_lg_u32 s5, 0")
    a("s_cbranch_scc1 %s" % lq)
    a("buffer_store_short v%d, v9, %s, s9 offen sc1" % (T, S(SWS)))
    a("%s:" % lq)
    a("s_mov_b64 exec, s[40:41]")
    H = T + 10
    a("v_cvt_pk_bf16_f32 v%d, v%d, v%d" % (T + 4, T + 4, T + 4))
    a("v_and_b32 v%d, 0xffff0000, v%d" % (T + 4, T + 4))
    a("s_nop 1")
    a("v_mov_b32_dpp v%d, v%d row_ror:8 row_mask:0xf bank_mask:0xf" % (T + 5, T + 4))
    k0 = 0.7978845608028654; k1 = 0.044715
    a("v_mul_f32 v%d, v%d, v%d" % (T + 6, T + 4, T + 4))
    a("v_mul_f32 v%d, v%d, v%d" % (T + 6, T + 6, T + 4))
    a("v_mul_f32 v%d, 0x%x, v%d" % (T + 6, f2u(k1), T + 6))
    a("v_add_f32 v%d, v%d, v%d" % (T + 6, T + 6, T + 4))
    a("v_mul_f32 v%d, 0x%x, v%d" % (T + 6, f2u(-2 * k0 * LOG2E), T + 6))
    a("v_exp_f32 v%d, v%d" % (T + 6, T + 6))
    a("s_nop 0")
    a("v_add_f32 v%d, 1.0, v%d" % (T + 6, T + 6))
    a("v_rcp_f32 v%d, v%d" % (T + 6, T + 6))
    a("s_nop 0")
    a("v_mul_f32 v%d, v%d, v%d" % (T + 6, T + 6, T + 4))
    rbf(T + 6)
    a("v_mul_f32 v%d, v%d, v%d" % (H, T + 6, T + 5))
    rbf(H)
    def grid_barrier(idx):
        a("s_waitcnt vmcnt(0) lgkmcnt(0)")
        if stamps: a("s_memrealtime s[%d:%d]" % (54 + 4 * idx, 55 + 4 * idx))
        a("s_barrier")
        lb = a.label("L_gb")
        a("s_cmp_lg_u32 s5, 0")
        a("s_cbranch_scc1 %s_done" % lb)
        a("v_mov_b32 v3, %d" % (idx * 64))
        a("v_mov_b32 v4, 1")
        a("s_mov_b64 s[42:43], exec")
        a("s_mov_b64 exec, 1")
        a("global_atomic_add v3, v4, s[36:37] sc1")
        a("s_mov_b32 s44, 0")
        a("%s:" % lb)
        a("global_load_dword v4, v3, s[36:37] sc1")
        a("s_waitcnt vmcnt(0)")
        a("v_readfirstlane_b32 s45, v4")
        a("s_cmp_ge_u32 s45, 256")
        a("s_cbranch_scc1 %s_ok" % lb)
        a("s_add_u32 s44, s44, 1")
        a("s_cmp_lt_u32 s44, 200000")
        a("s_sleep 1")
        a("s_cbranch_scc1 %s" % lb)
        a("%s_ok:" % lb)
        a("s_mov_b64 exec, s[42:43]")
        a("%s_done:" % lb)
        a("s_barrier")
        if stamps: a("s_memrealtime s[%d:%d]" % ((56 + 4 * idx, 57 + 4 * idx) if idx < 2 else (100, 101)))
    grid_barrier(0)
    QB = T + 12
    a("v_and_b32 v4, 15, v2")
    a("v_lshrrev_b32 v4, 3, v4")
    a("v_lshlrev_b32 v4, 8, v4")
    a("v_lshrrev_b32 v9, 4, v2")
    a("v_lshlrev_b32 v9, 4, v9")
    a("v_add_u32 v4, v4, v9")
    a("s_lshl_b32 s9, s3, 10")
    a("s_add_u32 s9, s9, %d" % WS_Q)
    for half in range(2):
        for i in range(4):
            r = QB + 16 * half + 4 * i
            a("buffer_load_dwordx4 v[%d:%d], v4, %s, s9 offen offset:%d sc1" % (r, r + 3, S(SWS), half * 512 + i * 64))
    a("s_waitcnt vmcnt(0)")
    SC = QB + 32
    for half in range(2):
        for t in range(2):
            d = SC + 8 * half + 4 * t
            for i in range(4):
                c = "0" if i == 0 else "v[%d:%d]" % (d, d + 3)
                a("v_mfma_f32_16x16x32_bf16 v[%d:%d], v[%d:%d], v[%d:%d], %s" % (d, d + 3, VK + 16 * t + 4 * i, VK + 16 * t + 4 * i + 3, QB + 16 * half + 4 * i, QB + 16 * half + 4 * i + 3, c))
    a("s_nop 7")
    a("s_nop 1")
    SCALE = f2u(128 ** -0.5)
    for k in range(16):
        rbf(SC + k)
        a("v_mul_f32 v%d, 0x%x, v%d" % (SC + k, SCALE, SC + k))
        rbf(SC + k)
    MX = SC + 16
    for half in range(2):
        b = SC + 8 * half
        a("v_max3_f32 v%d, v%d, v%d, v%d" % (MX + half, b, b + 1, b + 2))
        a("v_max3_f32 v%d, v%d, v%d, v%d" % (MX + half, MX + half, b + 3, b + 4))
        a("v_max3_f32 v%d, v%d, v%d, v%d" % (MX + half, MX + half, b + 5, b + 6))
        a("v_max_f32 v%d, v%d, v%d" % (MX + half, MX + half, b + 7))
    TM = MX + 2
    for half in range(2):
        v = MX + half
        a("v_mov_b32 v%d, v%d" % (TM, v))
        a("s_nop 1")
        a("v_permlane16_swap_b32 v%d, v%d" % (v, TM))
        a("s_nop 1")
        a("v_max_f32 v%d, v%d, v%d" % (v, v, TM))
        a("v_mov_b32 v%d, v%d" % (TM, v))
        a("s_nop 1")
        a("v_permlane32_swap_b32 v%d, v%d" % (v, TM))
        a("s_nop 1")
        a("v_max_f32 v%d, v%d, v%d" % (v, v, TM))
    LM = 2560
    LL = 2624
    a("v_and_b32 v4, 15, v2")
    a("v_lshrrev_b32 v9, 3, v4")
    a("s_lshl_b32 s9, s5, 2")
    a("v_add_u32 v3, s9, v9")
    a("v_lshlrev_b32 v3, 2, v3")
    a("v_and_b32 v4, 55, v2")
    a("v_cmp_eq_u32 vcc, 0, v4")
    a("s_and_saveexec_b64 s[40:41], vcc")
    a("ds_write_b32 v3, v%d offset:%d" % (MX, LM))
    a("ds_write_b32 v3, v%d offset:%d" % (MX + 1, LM + 8))
    a("s_mov_b64 exec, s[40:41]")
    a("s_waitcnt lgkmcnt(0)")
    a("s_barrier")
    a("v_lshlrev_b32 v4, 2, v9")
    for half in range(2):
        for wv in range(4):
            a("ds_read_b32 v%d, v4 offset:%d" % (TM + 4 * half + wv, LM + 16 * wv + 8 * half))
    a("s_waitcnt lgkmcnt(0)")
    for half in range(2):
        b = TM + 4 * half
        a("v_max3_f32 v%d, v%d, v%d, v%d" % (MX + half, b, b + 1, b + 2))
        a("v_max_f32 v%d, v%d, v%d" % (MX + half, MX + half, b + 3))
    LS = TM
    for half in range(2):
        for k in range(8):
            r = SC + 8 * half + k
            a("v_sub_f32 v%d, v%d, v%d" % (r, r, MX + half))
            a("v_mul_f32 v%d, 0x%x, v%d" % (r, f2u(LOG2E), r))
            a("v_exp_f32 v%d, v%d" % (r, r))
        a("s_nop 0")
        b = SC + 8 * half
        a("v_add_f32 v%d, v%d, v%d" % (LS + half, b, b + 1))
        for k in range(2, 8):
            a("v_add_f32 v%d, v%d, v%d" % (LS + half, LS + half, b + k))
    TL = LS + 2
    for half in range(2):
        v = LS + half
        a("v_mov_b32 v%d, v%d" % (TL, v))
        a("s_nop 1")
        a("v_permlane16_swap_b32 v%d, v%d" % (v, TL))
        a("s_nop 1")
        a("v_add_f32 v%d, v%d, v%d" % (v, v, TL))
        a("v_mov_b32 v%d, v%d" % (TL, v))
        a("s_nop 1")
        a("v_permlane32_swap_b32 v%d, v%d" % (v, TL))
        a("s_nop 1")
        a("v_add_f32 v%d, v%d, v%d" % (v, v, TL))
    a("v_and_b32 v4, 55, v2")
    a("v_cmp_eq_u32 vcc, 0, v4")
    a("s_and_saveexec_b64 s[40:41], vcc")
    a("ds_write_b32 v3, v%d offset:%d" % (LS, LL))
    a("ds_write_b32 v3, v%d offset:%d" % (LS + 1, LL + 8))
    a("s_mov_b64 exec, s[40:41]")
    MK = TL + 2
    a("v_and_b32 v4, 7, v2")
    a("v_and_b32 v3, 1, v4")
    a("v_lshlrev_b32 v3, 4, v3")
    a("v_mov_b32 v%d, 0xffff" % (MK + 3))
    a("v_lshlrev_b32 v3, v3, v%d" % (MK + 3))
    a("v_lshrrev_b32 v4, 1, v4")
    for r in range(4):
        a("v_cmp_eq_u32 vcc, %d, v4" % r)
        a("s_nop 1")
        a("v_cndmask_b32 v%d, 0, v3, vcc" % (MK + r))
    OA = MK + 4
    AO = OA + 8
    first = {0: True, 1: True}
    n = 0
    for t in range(2):
        for r in range(4):
            for half in range(2):
                p = SC + 8 * half + 4 * t + r
                ao = AO + 4 * (n & 1); n += 1
                a("v_cvt_pk_bf16_f32 v%d, v%d, v%d" % (ao + 3, p, p))
                for k in range(3):
                    a("v_and_b32 v%d, v%d, v%d" % (ao + k, ao + 3, MK + k))
                a("v_and_b32 v%d, v%d, v%d" % (ao + 3, ao + 3, MK + 3))
                a("s_nop 1")
                d = OA + 4 * half
                c = "0" if first[half] else "v[%d:%d]" % (d, d + 3)
                first[half] = False
                vv = VV + 16 * t + 4 * r
                a("v_mfma_f32_16x16x32_bf16 v[%d:%d], v[%d:%d], v[%d:%d], %s" % (d, d + 3, ao, ao + 3, vv, vv + 3, c))
    a("s_nop 7")
    a("s_nop 1")
    LO = 4096
    a("v_lshrrev_b32 v4, 5, v2")
    a("v_lshlrev_b32 v4, 9, v4")
    a("v_and_b32 v3, 15, v2")
    a("v_lshlrev_b32 v3, 5, v3")
    a("v_add_u32 v4, v4, v3")
    a("v_bfe_u32 v3, v2, 4, 1")
    a("v_lshlrev_b32 v3, 4, v3")
    a("v_add_u32 v4, v4, v3")
    a("s_lshl_b32 s9, s5, 11")
    a("v_add_u32 v4, s9, v4")
    a("ds_write_b128 v4, v[%d:%d] offset:%d" % (OA, OA + 3, LO))
    a("ds_write_b128 v4, v[%d:%d] offset:%d" % (OA + 4, OA + 7, LO + 1024))
    a("s_waitcnt lgkmcnt(0)")
    a("s_barrier")
    a("v_lshlrev_b32 v4, 3, v0")
    for wv in range(4):
        a("ds_read_b64 v[%d:%d], v4 offset:%d" % (OA + 2 * wv, OA + 2 * wv + 1, LO + 2048 * wv))
    a("v_and_b32 v3, 3, v0")
    a("v_lshlrev_b32 v3, 2, v3")
    for wv in range(4):
        a("ds_read_b32 v%d, v3 offset:%d" % (AO + wv, LL + 16 * wv))
    a("ds_read_b32 v%d, v3 offset:%d" % (AO + 4, LM))
    a("ds_read_b32 v%d, v3 offset:%d" % (AO + 5, LM + 16))
    a("ds_read_b32 v%d, v3 offset:%d" % (AO + 6, LM + 32))
    a("ds_read_b32 v%d, v3 offset:%d" % (AO + 7, LM + 48))
    a("s_waitcnt lgkmcnt(0)")
    a("v_pk_add_f32 v[%d:%d], v[%d:%d], v[%d:%d]" % (OA, OA + 1, OA, OA + 1, OA + 2, OA + 3))
    a("v_pk_add_f32 v[%d:%d], v[%d:%d], v[%d:%d]" % (OA + 4, OA + 5, OA + 4, OA + 5, OA + 6, OA + 7))
    a("v_pk_add_f32 v[%d:%d], v[%d:%d], v[%d:%d]" % (OA, OA + 1, OA, OA + 1, OA + 4, OA + 5))
    a("v_add_f32 v%d, v%d, v%d" % (AO, AO, AO + 1))
    a("v_add_f32 v%d, v%d, v%d" % (AO + 2, AO + 2, AO + 3))
    a("v_add_f32 v%d, v%d, v%d" % (AO + 1, AO, AO + 2))
    a("v_max3_f32 v%d, v%d, v%d, v%d" % (AO, AO + 4, AO + 5, AO + 6))
    a("v_max_f32 v%d, v%d, v%d" % (AO, AO, AO + 7))
    a("s_lshl_b32 s9, s3, 5")
    a("s_add_u32 s9, s9, s4")
    a("s_lshl_b32 s14, s9, 11")
    a("s_add_u32 s14, s14, %d" % WS_O)
    a("buffer_store_dwordx2 v[%d:%d], v4, %s, s14 offen sc1" % (OA, OA + 1, S(SWS))) if False else None
    a("v_lshlrev_b32 v4, 3, v0")
    a("buffer_store_dwordx2 v[%d:%d], v4, %s, s14 offen sc1" % (OA, OA + 1, S(SWS)))
    a("s_lshl_b32 s14, s9, 5")
    a("s_add_u32 s14, s14, %d" % WS_ML)
    a("v_lshlrev_b32 v4, 3, v0")
    a("v_cmp_gt_u32 vcc, 4, v0")
    a("s_and_saveexec_b64 s[40:41], vcc")
    lq = a.label("L_ml")
    a("s_cbranch_execz %s" % lq)
    a("buffer_store_dwordx2 v[%d:%d], v4, %s, s14 offen sc1" % (AO, AO + 1, S(SWS)))
    a("%s:" % lq)
    a("s_mov_b64 exec, s[40:41]")
    grid_barrier(1)
    a("s_lshr_b32 s6, s2, 5")
    a("s_lshr_b32 s7, s2, 3")
    a("s_and_b32 s7, s7, 3")
    a("s_and_b32 s8, s2, 7")
    a("v_and_b32 v3, 31, v2")
    a("v_lshlrev_b32 v4, 5, v3")
    a("s_lshl_b32 s9, s6, 10")
    a("s_lshl_b32 s14, s7, 3")
    a("s_add_u32 s9, s9, s14")
    a("s_add_u32 s9, s9, %d" % WS_ML)
    C = T + 12
    a("buffer_load_dwordx2 v[%d:%d], v4, %s, s9 offen sc1" % (C, C + 1, S(SWS)))
    a("v_lshlrev_b32 v4, 11, v3")
    a("v_lshrrev_b32 v9, 5, v2")
    a("v_lshlrev_b32 v9, 3, v9")
    a("v_add_u32 v4, v4, v9")
    a("s_lshl_b32 s9, s6, 16")
    a("s_lshl_b32 s14, s7, 9")
    a("s_add_u32 s9, s9, s14")
    a("s_lshl_b32 s14, s8, 6")
    a("s_add_u32 s9, s9, s14")
    a("s_lshl_b32 s14, s5, 4")
    a("s_add_u32 s9, s9, s14")
    a("s_add_u32 s9, s9, %d" % WS_O)
    a("buffer_load_dwordx2 v[%d:%d], v4, %s, s9 offen sc1" % (C + 2, C + 3, S(SWS)))
    a("s_waitcnt vmcnt(0)")
    a("v_mov_b32 v%d, v%d" % (C + 4, C))
    allreduce("v_max_f32", C + 4, C + 5)
    a("v_sub_f32 v%d, v%d, v%d" % (C, C, C + 4))
    a("v_mul_f32 v%d, 0x%x, v%d" % (C, f2u(LOG2E), C))
    a("v_exp_f32 v%d, v%d" % (C, C))
    a("s_nop 0")
    a("v_mul_f32 v%d, v%d, v%d" % (C + 1, C + 1, C))
    a("v_mul_f32 v%d, v%d, v%d" % (C + 2, C + 2, C))
    a("v_mul_f32 v%d, v%d, v%d" % (C + 3, C + 3, C))
    for r in (C + 1, C + 2, C + 3):
        for rot in (8, 4, 2, 1):
            a("s_nop 1")
            a("v_add_f32_dpp v%d, v%d, v%d row_ror:%d row_mask:0xf bank_mask:0xf" % (r, r, r, rot))
        a("v_mov_b32 v%d, v%d" % (C + 5, r))
        a("s_nop 1")
        a("v_permlane16_swap_b32 v%d, v%d" % (r, C + 5))
        a("s_nop 1")
        a("v_add_f32 v%d, v%d, v%d" % (r, r, C + 5))
    a("v_rcp_f32 v%d, v%d" % (C + 1, C + 1))
    a("s_nop 0")
    a("v_mul_f32 v%d, v%d, v%d" % (C + 2, C + 2, C + 1))
    a("v_mul_f32 v%d, v%d, v%d" % (C + 3, C + 3, C + 1))
    rbf(C + 2); rbf(C + 3)
    a("s_nop 0")
    a("v_readlane_b32 s46, v%d, 0" % (C + 2))
    a("v_readlane_b32 s47, v%d, 0" % (C + 3))
    a("v_readlane_b32 s48, v%d, 32" % (C + 2))
    a("v_readlane_b32 s49, v%d, 32" % (C + 3))
    a("s_lshl_b32 s9, s5, 1")
    a("s_nop 3")
    a("v_readlane_b32 s50, v%d, s9" % H)
    a("s_add_u32 s9, s9, 1")
    a("s_nop 3")
    a("v_readlane_b32 s51, v%d, s9" % H)
    a("s_cmp_ge_u32 s4, 28")
    a("s_cselect_b32 s50, 0, s50")
    a("s_cselect_b32 s51, 0, s51")
    PA = C + 8
    W8b = PA + 8
    a("s_nop 1")
    for i in range(4):
        unpack(W8b, VWO + 4 * i, 4)
        for k in range(8):
            if i == 0:
                a("v_mul_f32 v%d, s%d, v%d" % (PA + k, 46 + i, W8b + k))
            else:
                a("v_fma_f32 v%d, s%d, v%d, v%d" % (PA + k, 46 + i, W8b + k, PA + k))
    for i in range(2):
        unpack(W8b, VD + 4 * i, 4)
        for k in range(8):
            a("v_fma_f32 v%d, s%d, v%d, v%d" % (PA + k, 50 + i, W8b + k, PA + k))
    LP = 4096
    a("s_barrier")
    a("v_lshlrev_b32 v4, 5, v2")
    a("s_lshl_b32 s9, s5, 11")
    a("v_add_u32 v4, s9, v4")
    a("ds_write_b128 v4, v[%d:%d] offset:%d" % (PA, PA + 3, LP))
    a("ds_write_b128 v4, v[%d:%d] offset:%d" % (PA + 4, PA + 7, LP + 16))
    a("s_waitcnt lgkmcnt(0)")
    a("s_barrier")
    a("v_lshlrev_b32 v4, 3, v0")
    for wv in range(4):
        a("ds_read_b64 v[%d:%d], v4 offset:%d" % (PA + 2 * wv, PA + 2 * wv + 1, LP + 2048 * wv))
    a("s_waitcnt lgkmcnt(0)")
    a("v_pk_add_f32 v[%d:%d], v[%d:%d], v[%d:%d]" % (PA, PA + 1, PA, PA + 1, PA + 2, PA + 3))
    a("v_pk_add_f32 v[%d:%d], v[%d:%d], v[%d:%d]" % (PA + 4, PA + 5, PA + 4, PA + 5, PA + 6, PA + 7))
    a("v_pk_add_f32 v[%d:%d], v[%d:%d], v[%d:%d]" % (PA, PA + 1, PA, PA + 1, PA + 4, PA + 5))
    a("s_lshl_b32 s14, s2, 11")
    a("s_add_u32 s14, s14, %d" % WS_P)
    a("buffer_store_dwordx2 v[%d:%d], v4, %s, s14 offen sc1" % (PA, PA + 1, S(SWS)))
    grid_barrier(2)
    a("s_cmp_ge_u32 s2, 8")
    a("s_cbranch_scc1 L_end")
    F = T
    a("v_lshlrev_b32 v4, 2, v2")
    a("s_lshl_b32 s9, s2, 8")
    a("s_lshl_b32 s14, s5, 17")
    a("s_add_u32 s9, s9, s14")
    a("s_add_u32 s9, s9, %d" % WS_P)
    for half in range(2):
        for i in range(32):
            a("s_add_u32 s14, s9, %d" % ((half * 32 + i) * 2048))
            a("buffer_load_dword v%d, v4, %s, s14 offen sc1" % (F + i, S(SWS)))
        a("s_waitcnt vmcnt(0)")
        if half == 0:
            a("v_mov_b32 v%d, v%d" % (F + 40, F))
        else:
            a("v_add_f32 v%d, v%d, v%d" % (F + 40, F + 40, F))
        for i in range(1, 32):
            a("v_add_f32 v%d, v%d, v%d" % (F + 40, F + 40, F + i))
    a("v_lshlrev_b32 v4, 2, v0")
    a("ds_write_b32 v4, v%d offset:0" % (F + 40))
    a("s_lshl_b32 s9, s2, 7")
    a("v_lshlrev_b32 v3, 1, v2")
    a("buffer_load_ushort v%d, v3, %s, s9 offen" % (F + 41, S(SX)))
    a("s_waitcnt lgkmcnt(0)")
    a("s_barrier")
    a("v_lshlrev_b32 v4, 2, v2")
    for wv in range(4):
        a("ds_read_b32 v%d, v4 offset:%d" % (F + wv, 256 * wv))
    a("s_waitcnt vmcnt(0) lgkmcnt(0)")
    a("v_add_f32 v%d, v%d, v%d" % (F, F, F + 1))
    a("v_add_f32 v%d, v%d, v%d" % (F + 2, F + 2, F + 3))
    a("v_add_f32 v%d, v%d, v%d" % (F, F, F + 2))
    a("v_lshlrev_b32 v%d, 16, v%d" % (F + 41, F + 41))
    a("v_add_f32 v%d, v%d, v%d" % (F, F, F + 41))
    a("v_cvt_pk_bf16_f32 v%d, v%d, v%d" % (F, F, F))
    srd(SK, 34, 1024)
    a("s_cmp_lg_u32 s5, 0")
    a("s_cbranch_scc1 L_end")
    a("buffer_store_short v%d, v3, %s, s9 offen" % (F, S(SK)))
    if stamps:
        a("s_waitcnt lgkmcnt(0)")
        a("s_cmp_lg_u32 s2, 0")
        a("s_cbranch_scc1 L_end")
        for k, r in enumerate((54, 56, 58, 60, 62, 100)):
            a("s_sub_u32 s%d, s%d, s52" % (r, r))
            a("v_mov_b32 v4, s%d" % r)
            a("v_mov_b32 v3, %d" % (16 + 4 * k))
            a("global_store_dword v3, v4, s[36:37]")
    a("L_end:")
    return wrap(a.text(), 256, 256, 16384, 256, 102)

if __name__ == "__main__":
    open("v1.s", "w").write(gen())
    open("v1_st.s", "w").write(gen(stamps=True))
    open("v1_st_nont.s", "w").write(gen(nt=False, stamps=True))
```

```python
import re
TRANS = ("v_exp_f32", "v_log_f32", "v_rcp_f32", "v_rsq_f32", "v_sqrt_f32", "v_sin_f32", "v_cos_f32")
def regs(tok):
    tok = tok.strip()
    m = re.fullmatch(r"-?\|?([vsa])(\d+)\|?", tok)
    if m: return {(m.group(1), int(m.group(2)))}
    m = re.fullmatch(r"-?([vsa])\[(\d+):(\d+)\]", tok)
    if m: return {(m.group(1), i) for i in range(int(m.group(2)), int(m.group(3)) + 1)}
    if tok == "vcc": return {("s", "vcc")}
    if tok == "exec": return {("s", "exec")}
    if tok == "m0": return {("s", "m0")}
    return set()
def parse(line):
    line = line.split(";")[0].strip()
    if not line or line.endswith(":") or line.startswith("."): return None
    parts = line.split(None, 1)
    op = parts[0]
    rest = parts[1] if len(parts) > 1 else ""
    ops = [o.strip() for o in rest.split(",")] if rest else []
    if ops:
        last = ops[-1].split()
        ops[-1] = last[0] if last else ""
        mods = last[1:]
    else:
        mods = []
    return op, ops, mods, line
def classify(op, ops, mods):
    d = dict(op=op, valu=False, trans=False, dpp=False, perm=False, mfma=False, vmem=False, ds=False, salu=False, wv=set(), rv=set(), ws=set(), rs=set(), store=False, nop=0)
    allr = [regs(o) for o in ops]
    if op == "s_nop":
        d["nop"] = int(ops[0]) + 1
        return d
    if op.startswith("v_mfma"):
        d["mfma"] = True
        d["wv"] = allr[0]; d["rv"] = allr[1] | allr[2]; d["rc"] = allr[3]
        return d
    if op.startswith("v_"):
        d["valu"] = True
        d["trans"] = any(op.startswith(t) for t in TRANS)
        d["dpp"] = "_dpp" in op or any(m.startswith(("row_", "quad_perm", "wave_")) for m in mods)
        d["perm"] = op.startswith("v_permlane")
        if op.startswith("v_cmp"):
            d["ws"] = allr[0]; src = allr[1:]
        elif op.startswith(("v_readlane", "v_readfirstlane")):
            d["ws"] = allr[0]; src = allr[1:]; d["rl"] = True
        elif d["perm"]:
            d["wv"] = {r for r in allr[0] | allr[1]}; src = allr
        else:
            d["wv"] = {r for r in allr[0] if r[0] in "va"}; d["ws"] = {r for r in allr[0] if r[0] == "s"}
            src = allr[1:]
            if op.startswith(("v_fmac", "v_mac", "v_dot2c", "v_writelane")) or d["dpp"]:
                src = allr
            if op.startswith(("v_add_co", "v_sub_co", "v_addc_co")):
                d["ws"] |= allr[1]; src = allr[2:]
            if op.startswith("v_cndmask") and len(ops) == 3:
                src = src + [{("s", "vcc")}]
        for r in src:
            d["rv"] |= {x for x in r if x[0] in "va"}
            d["rs"] |= {x for x in r if x[0] == "s"}
        return d
    if op.startswith(("buffer_", "global_", "flat_")):
        d["vmem"] = True
        lds = "lds" in mods or "_lds_" in op
        if "load" in op and not lds:
            d["wv"] = allr[0]; src = allr[1:]
        elif "atomic" in op and "sc0" in mods:
            d["wv"] = allr[0]; src = allr[1:]
        else:
            src = allr
            if "store" in op:
                d["store"] = True
                d["wide"] = "x4" in op or "x3" in op
                d["sdata"] = allr[1] if op.startswith("global_") else allr[0]
        for r in src:
            d["rv"] |= {x for x in r if x[0] in "va"}
            d["rs"] |= {x for x in r if x[0] == "s"}
        if lds: d["rs"] |= {("s", "m0")}; d["ldsdma"] = True
        return d
    if op.startswith("ds_"):
        d["ds"] = True
        if op.startswith(("ds_read", "ds_bpermute", "ds_permute", "ds_swizzle")):
            d["wv"] = allr[0]; src = allr[1:]
        else:
            src = allr
        for r in src: d["rv"] |= {x for x in r if x[0] in "va"}
        return d
    if op.startswith("s_"):
        d["salu"] = True
        if op.startswith(("s_cmp", "s_cbranch", "s_branch", "s_waitcnt", "s_barrier", "s_endpgm", "s_setprio", "s_sleep")):
            for r in allr: d["rs"] |= r
        else:
            if allr: d["ws"] = allr[0]
            for r in allr[1:]: d["rs"] |= r
            if "saveexec" in op: d["ws"] |= {("s", "exec")}
        return d
    return d
def check(text, verbose=True):
    ins = []
    for ln in text.split("\n"):
        p = parse(ln)
        if p is None: continue
        op, ops, mods, line = p
        c = classify(op, ops, mods); c["line"] = line
        ins.append(c)
    problems = []
    for i, c in enumerate(ins):
        dist = 0
        for k in range(i - 1, max(-1, i - 25), -1):
            p = ins[k]
            need = 0; why = ""
            def upd(n, w):
                nonlocal need, why
                if n > need: need, why = n, w
            if p["valu"]:
                if (c["dpp"]) and (p["wv"] & c["rv"]): upd(2, "VALU->DPP")
                if c["perm"] and (p["wv"] & c["rv"]): upd(2, "VALU->permlane")
                if c["mfma"] and (p["wv"] & (c["rv"] | c.get("rc", set()))): upd(2, "VALU->MFMA")
                if p["trans"] and c["valu"] and not c["trans"] and (p["wv"] & c["rv"]): upd(1, "trans->VALU")
                if p["trans"] and c["mfma"] and (p["wv"] & c["rv"]): upd(2, "trans->MFMA")
                if c.get("rl") and (p["wv"] & c["rv"]): upd(1, "VALU->readlane")
                if p["ws"] and c["valu"] and (p["ws"] & c["rs"]):
                    upd(4 if c.get("rl") else 2, "VALU sgpr->VALU")
                if p["ws"] and c["vmem"] and (p["ws"] & c["rs"]): upd(5, "VALU sgpr->VMEM")
                if p["ws"] and c["salu"] and (p["ws"] & c["rs"]) and ("s", "vcc") not in (p["ws"] & c["rs"]): upd(1, "VALU sgpr->SALU (pad)")
            if p["mfma"]:
                if (c["valu"] or c["vmem"] or c["ds"]) and (p["wv"] & (c["rv"] | c["wv"])): upd(8, "MFMA->VALU/MEM")
                if c["mfma"] and (p["wv"] & c["rv"]): upd(8, "MFMA->MFMA A/B")
                if c["mfma"] and (p["wv"] & c.get("rc", set())) and p["wv"] != c.get("rc"): upd(6, "MFMA->MFMA C overlap")
                if c["valu"] and (p.get("rc", set()) & c["wv"]): upd(3, "MFMA readsC->VALU write")
            if p.get("store") and p.get("wide") and c["valu"] and (p["sdata"] & c["wv"]): upd(2, "store data WAR")
            if p["salu"] and ("s", "m0") in p["ws"] and c.get("ldsdma"): upd(1, "M0->LDSDMA")
            if need > dist:
                problems.append("need %d have %d (%s): [%s] -> [%s]" % (need, dist, why, p["line"], c["line"]))
            dist += p["nop"] if p["nop"] else 1
            if dist >= 20: break
    if verbose:
        for p in problems: print("HAZARD:", p)
        print("hazard check: %d instrs, %d problems" % (len(ins), len(problems)))
    return problems
if __name__ == "__main__":
    import sys
    check(open(sys.argv[1]).read())
```

```python
import sys, struct
from asmgen import *
import hazard

LOG2E = 1.4426950408889634
def f2u(f):
    return struct.unpack("<I", struct.pack("<f", f))[0]

WS_E = 0
WS_Q = 0x10000
WS_G = 0x20000
WS_O = 0x40000
WS_M = 0xC0000
WS_P = 0xD0000
WS_ST = 0x200000
L_K = 0
L_XN = 32768
L_XR = 33792
L_QP = 34816
L_GP = 36864
L_QB = 40960
L_MM = 41984
L_LL = 42112
L_OP = 43008
L_PP = 59392
LDS_BYTES = 63488

class G:
    def __init__(self, stamps=False, prefetch_code=True, nt=True, spin=200000):
        self.a = Asm()
        self.stamps = stamps
        self.nst = 0
        self.stnames = []
        self.q = []
        self.nt = " nt" if nt else ""
        self.prefetch_code = prefetch_code
        self.spin = spin
    def stamp(self, name):
        if not self.stamps: return
        k = self.nst; self.nst += 1
        assert k < 21
        self.stnames.append(name)
        self.a("s_memrealtime s[%d:%d]" % (58 + 2 * k, 59 + 2 * k))
    def issue(self, name, text):
        self.a(text); self.q.append(name)
    def wait(self, name, lgkm=False):
        if name not in self.q:
            if lgkm: self.a("s_waitcnt lgkmcnt(0)")
            return
        i = self.q.index(name)
        n = len(self.q) - 1 - i
        self.a("s_waitcnt vmcnt(%d)%s" % (n, " lgkmcnt(0)" if lgkm else ""))
        self.q = self.q[i + 1:]

def gen(stamps=False, nt=True, prefetch_code=True, sched="A"):
    g = G(stamps=stamps, nt=nt, prefetch_code=prefetch_code)
    a = g.a
    NT = g.nt
    sJ, sG, sS, sW = 2, 3, 4, 5
    pX, pK, pV, pWQ, pWO, pGT, pUP, pDN, pOUT, pDBG, pWS = 16, 18, 20, 22, 24, 28, 30, 32, 34, 36, 38
    sE, sT4, sSELA, sSELB, sSELT, sMASK = 40, 41, 42, 43, 44, 45
    sROW1, sROW2, sROW3 = 46, 48, 50
    sCNT = 52
    sRBW, sCB4 = 53, 54
    sT = [6, 7, 8, 9, 10, 11, 12, 13, 14, 15]
    sC, sS1, sS2 = 55, 56, 57
    def P(p): return "s[%d:%d]" % (p, p + 1)
    vL, vX16, vWQ0, vWQ1, vGU = 2, 3, 4, 5, 6
    vK = [7, 8, 9, 10]
    vV, vWO, vDN = 11, 12, 13
    MK = 14
    vTAG = 18
    vt0, vt1 = 19, 1
    X, WQ, GT, UP, VV, WO, DN = 20, 24, 32, 36, 40, 56, 64
    PQ, PG, PO, PM = 68, 72, 76, 80
    W = 84
    def V(r, n=1): return "v%d" % r if n == 1 else "v[%d:%d]" % (r, r + n - 1)

    a("s_cmp_ge_u32 s2, 256")
    a("s_cbranch_scc1 L_end")
    g.stamp("entry")
    a("s_load_dwordx16 s[16:31], s[0:1], 0")
    a("s_load_dwordx8 s[32:39], s[0:1], 64")
    a("v_lshrrev_b32 v1, 6, v0")
    a("v_and_b32 v%d, 63, v0" % vL)
    a("s_and_b32 s3, s2, 7")
    a("v_readfirstlane_b32 s5, v1")
    a("s_lshr_b32 s4, s2, 3")
    a("v_lshlrev_b32 v%d, 4, v%d" % (vX16, vL))
    a("v_lshrrev_b32 v1, 3, v%d" % vL)
    a("v_and_b32 v%d, 0x70, v%d" % (vt0, vX16))
    a("v_lshl_add_u32 v%d, v1, 13, v%d" % (vWQ0, vt0))
    a("v_mul_u32_u24 v%d, 3584, v1" % vGU)
    a("v_add_u32 v%d, v%d, v%d" % (vGU, vGU, vt0))
    a("s_lshr_b32 s6, s4, 3")
    a("s_and_b32 s7, s4, 7")
    a("s_lshl_b32 s8, s6, 20")
    a("s_lshl_b32 s9, s5, 17")
    a("s_add_u32 s8, s8, s9")
    a("s_lshl_b32 s9, s3, 10")
    a("s_add_u32 s8, s8, s9")
    a("s_lshl_b32 s9, s7, 7")
    a("s_add_u32 s8, s8, s9")
    a("v_add_u32 v%d, s8, v%d" % (vWQ0, vWQ0))
    a("v_add_u32 v%d, 0x10000, v%d" % (vWQ1, vWQ0))
    a("s_mul_i32 s8, s7, 229376")
    a("s_mul_i32 s9, s5, 28672")
    a("s_add_u32 s8, s8, s9")
    a("s_lshl_b32 s9, s3, 9")
    a("s_add_u32 s8, s8, s9")
    a("s_lshl_b32 s9, s6, 7")
    a("s_add_u32 s8, s8, s9")
    a("v_add_u32 v%d, s8, v%d" % (vGU, vGU))
    a("s_lshl_b32 s%d, s3, 3" % sRBW)
    a("s_lshr_b32 s9, s4, 2")
    a("s_add_u32 s%d, s%d, s9" % (sRBW, sRBW))
    a("s_and_b32 s%d, s4, 3" % sCB4)
    a("s_waitcnt lgkmcnt(0)")
    g.stamp("karg")
    a("v_mov_b32 v1, 0")
    g.issue("e", "global_load_dword v149, v1, %s sc1" % P(pWS))
    g.issue("x", "global_load_dwordx4 %s, v%d, %s" % (V(X, 4), vX16, P(pX)))
    g.issue("wq0", "global_load_dwordx4 %s, v%d, %s%s" % (V(WQ, 4), vWQ0, P(pWQ), NT))
    g.issue("wq1", "global_load_dwordx4 %s, v%d, %s%s" % (V(WQ + 4, 4), vWQ1, P(pWQ), NT))
    a("v_lshrrev_b32 v1, 4, v%d" % vL)
    a("v_and_b32 v%d, 0xf0, v%d" % (vt0, vX16))
    a("v_lshl_add_u32 v%d, v1, 10, v%d" % (vDN, vt0))
    a("s_lshl_b32 s8, s%d, 15" % sRBW)
    a("s_lshl_b32 s9, s5, 12")
    a("s_add_u32 s8, s8, s9")
    a("s_lshl_b32 s9, s%d, 8" % sCB4)
    a("s_add_u32 s8, s8, s9")
    a("v_add_u32 v%d, s8, v%d" % (vDN, vDN))
    a("s_cmp_lg_u32 s3, 7")
    a("s_cbranch_scc1 L_hasB")
    a("s_mov_b64 %s, %s" % (P(pGT), P(pX)))
    a("s_mov_b64 %s, %s" % (P(pUP), P(pX)))
    a("s_mov_b64 %s, %s" % (P(pDN), P(pX)))
    a("v_mov_b32 v%d, v%d" % (vGU, vX16))
    a("v_mov_b32 v%d, v%d" % (vDN, vX16))
    a("L_hasB:")
    g.issue("gt", "global_load_dwordx4 %s, v%d, %s%s" % (V(GT, 4), vGU, P(pGT), NT))
    g.issue("up", "global_load_dwordx4 %s, v%d, %s%s" % (V(UP, 4), vGU, P(pUP), NT))
    g.stamp("issue0")
    if prefetch_code:
        a("s_cmp_lt_u32 s2, 16")
        a("s_cbranch_scc0 L_nopf")
        a("s_cmp_eq_u32 s5, 7")
        a("s_cbranch_scc0 L_nopf")
        a("s_getpc_b64 s[8:9]")
        a("L_pc:")
        a("v_lshlrev_b32 v1, 7, v%d" % vL)
        a("v_min_u32 v1, L_end-L_pc, v1")
        a("global_load_dword v148, v1, s[8:9]")
        a("L_nopf:")
    a("s_lshl_b32 s8, s3, 24")
    a("s_lshl_b32 s9, s4, 15")
    a("s_add_u32 s8, s8, s9")
    a("s_lshl_b32 s9, s5, 12")
    a("s_add_u32 s8, s8, s9")
    a("s_add_u32 s8, s8, %d" % (61440 * 256))
    a("v_add_u32 v%d, s8, v%d" % (vV, vX16))
    a("v_lshrrev_b32 v1, 4, v%d" % vL)
    a("v_lshlrev_b32 v%d, 6, v1" % vt0)
    a("v_and_b32 v%d, 0xf0, v%d" % (vK[0], vX16))
    a("v_xor_b32 v%d, v%d, v%d" % (vK[0], vK[0], vt0))
    a("v_lshl_add_u32 v%d, v1, 8, v%d" % (vK[0], vK[0]))
    for i in range(1, 4):
        a("v_xor_b32 v%d, %d, v%d" % (vK[i], i << 4, vK[0]))
    for i in range(4):
        a("v_add_u32 v%d, s8, v%d" % (vK[i], vK[i]))
    a("v_and_b32 v%d, 1, v1" % vt0)
    a("v_lshrrev_b32 v1, 1, v1")
    a("v_lshl_add_u32 v1, v1, 2, v%d" % vt0)
    a("v_and_b32 v%d, 0xf0, v%d" % (vt0, vX16))
    a("v_lshl_add_u32 v%d, v1, 10, v%d" % (vWO, vt0))
    a("s_lshl_b32 s8, s%d, 16" % sRBW)
    a("s_lshl_b32 s9, s5, 13")
    a("s_add_u32 s8, s8, s9")
    a("s_lshl_b32 s9, s%d, 8" % sCB4)
    a("s_add_u32 s8, s8, s9")
    a("v_add_u32 v%d, s8, v%d" % (vWO, vWO))
    a("v_and_b32 v1, 1, v%d" % vL)
    a("v_lshlrev_b32 v1, 4, v1")
    a("v_mov_b32 v%d, 0xffff" % vt0)
    a("v_lshlrev_b32 v%d, v1, v%d" % (vt0, vt0))
    a("v_bfe_u32 v1, v%d, 1, 2" % vL)
    for r in range(4):
        a("v_cmp_eq_u32 vcc, %d, v1" % r)
        a("s_nop 1")
        a("v_cndmask_b32 v%d, 0, v%d, vcc" % (MK + r, vt0))
    a("s_mov_b32 s%d, 0x0c0c0400" % sSELA)
    a("s_mov_b32 s%d, 0x04000c0c" % sSELB)
    a("s_mov_b32 s%d, 0x07060500" % sSELT)
    a("s_mov_b32 s%d, 0xffffff00" % sMASK)
    a("s_mov_b32 s%d, 0xffff0000" % sROW1); a("s_mov_b32 s%d, 0" % (sROW1 + 1))
    a("s_mov_b32 s%d, 0" % sROW2); a("s_mov_b32 s%d, 0xffff" % (sROW2 + 1))
    a("s_mov_b32 s%d, 0" % sROW3); a("s_mov_b32 s%d, 0xffff0000" % (sROW3 + 1))
    a("s_mov_b32 s%d, 0" % sCNT)
    a("s_lshl_b32 s8, s5, 12")
    a("s_mov_b32 m0, s8")

    def unpack(dst, src, n):
        for k in range(n):
            a("v_lshlrev_b32 v%d, 16, v%d" % (dst + 2 * k, src + k))
            a("v_and_b32 v%d, 0xffff0000, v%d" % (dst + 2 * k + 1, src + k))
    g.wait("x", lgkm=True)
    g.stamp("x")
    a("v_readfirstlane_b32 s%d, v149" % sE)
    a("s_nop 0")
    a("s_add_u32 s%d, s%d, 1" % (sE, sE))
    a("s_and_b32 s8, s%d, 0xff" % sE)
    a("s_mul_i32 s%d, s8, 0x01010101" % sT4)
    a("v_mov_b32 v%d, s8" % vTAG)
    XF = W; D8 = W + 8; S1 = W + 16; S2 = W + 17; A_ = W + 18; B_ = W + 19
    unpack(XF, X, 4)
    a("v_readfirstlane_b32 s%d, v%d" % (sC, XF))
    a("ds_write_b128 v%d, %s offset:%d" % (vX16, V(X, 4), L_XR))
    a("s_nop 0")
    for k in range(8):
        a("v_subrev_f32 v%d, s%d, v%d" % (D8 + k, sC, XF + k))
    a("v_add_f32 v%d, v%d, v%d" % (S1, D8, D8 + 1))
    a("v_mul_f32 v%d, v%d, v%d" % (S2, D8, D8))
    for k in range(1, 8):
        if k > 1: a("v_add_f32 v%d, v%d, v%d" % (S1, S1, D8 + k))
        a("v_fmac_f32 v%d, v%d, v%d" % (S2, D8 + k, D8 + k))
    for mod in ("row_shr:1 row_mask:0xf bank_mask:0xf bound_ctrl:0", "row_shr:2 row_mask:0xf bank_mask:0xf bound_ctrl:0",
                "row_shr:4 row_mask:0xf bank_mask:0xf bound_ctrl:0", "row_shr:8 row_mask:0xf bank_mask:0xf bound_ctrl:0",
                "row_bcast:15 row_mask:0xa bank_mask:0xf", "row_bcast:31 row_mask:0xc bank_mask:0xf"):
        a("s_nop 0")
        a("v_add_f32_dpp v%d, v%d, v%d %s" % (S1, S1, S1, mod))
        a("v_add_f32_dpp v%d, v%d, v%d %s" % (S2, S2, S2, mod))
    a("s_nop 0")
    a("v_readlane_b32 s%d, v%d, 63" % (sS1, S1))
    a("v_readlane_b32 s%d, v%d, 63" % (sS2, S2))
    a("s_nop 0")
    a("v_mov_b32 v%d, 0x%x" % (A_, f2u(1.0 / 512)))
    a("v_mul_f32 v%d, s%d, v%d" % (B_, sS2, A_))
    a("v_mul_f32 v%d, s%d, v%d" % (A_, sS1, A_))
    a("v_fma_f32 v%d, -v%d, v%d, v%d" % (B_, A_, A_, B_))
    a("v_add_f32 v%d, s%d, v%d" % (A_, sC, A_))
    a("v_max_f32 v%d, 0, v%d" % (B_, B_))
    a("v_cvt_pk_bf16_f32 v%d, v%d, v%d" % (A_, A_, B_))
    a("v_and_b32 v%d, 0xffff0000, v%d" % (B_, A_))
    a("v_lshlrev_b32 v%d, 16, v%d" % (A_, A_))
    a("v_add_f32 v%d, 0x%x, v%d" % (B_, f2u(1e-5), B_))
    a("v_cvt_pk_bf16_f32 v%d, v%d, v%d" % (B_, B_, B_))
    a("v_and_b32 v%d, 0xffff0000, v%d" % (B_, B_))
    a("v_sqrt_f32 v%d, v%d" % (B_, B_))
    for k in range(8):
        a("v_sub_f32 v%d, v%d, v%d" % (XF + k, XF + k, A_))
    a("v_cvt_pk_bf16_f32 v%d, v%d, v%d" % (B_, B_, B_))
    a("v_and_b32 v%d, 0xffff0000, v%d" % (B_, B_))
    a("v_rcp_f32 v%d, v%d" % (B_, B_))
    for k in range(4):
        a("v_cvt_pk_bf16_f32 v%d, v%d, v%d" % (D8 + k, XF + 2 * k, XF + 2 * k + 1))
    unpack(XF, D8, 4)
    for k in range(8):
        a("v_mul_f32 v%d, v%d, v%d" % (XF + k, XF + k, B_))
    for k in range(4):
        a("v_cvt_pk_bf16_f32 v%d, v%d, v%d" % (D8 + k, XF + 2 * k, XF + 2 * k + 1))
    a("ds_write_b128 v%d, %s offset:%d" % (vX16, V(D8, 4), L_XN))
    a("v_lshrrev_b32 v1, 3, v%d" % vL)
    a("v_lshlrev_b32 v1, 1, v1")
    a("s_lshr_b32 s6, s4, 3")
    a("s_lshl_b32 s8, s6, 8")
    a("s_lshl_b32 s9, s5, 5")
    a("s_add_u32 s8, s8, s9")
    a("v_add_u32 v%d, s8, v1" % vt0)
    a("s_and_b32 s7, s4, 7")
    a("s_lshl_b32 s8, s7, 7")
    a("s_lshl_b32 s9, s5, 4")
    a("s_add_u32 s8, s8, s9")
    a("v_add_u32 v1, s8, v1")
    a("s_waitcnt lgkmcnt(0)")
    AQ0, AQ1, AG = W, W + 4, W + 8
    a("ds_read_u16 v%d, v%d offset:%d" % (AQ0 + 3, vt0, L_XN))
    a("ds_read_u16 v%d, v%d offset:%d" % (AQ1 + 3, vt0, L_XN + 16))
    a("ds_read_u16 v%d, v1 offset:%d" % (AG + 3, L_XN))
    a("s_waitcnt lgkmcnt(0)")
    def onehot(dst):
        a("v_lshl_or_b32 v%d, v%d, 16, v%d" % (dst + 3, dst + 3, dst + 3))
        for k in range(4):
            a("v_and_b32 v%d, v%d, v%d" % (dst + k, dst + 3, MK + k))
    onehot(AQ0); onehot(AQ1); onehot(AG)
    g.stamp("ln")
    DQ = W + 12; DG = W + 16; DU = W + 20
    g.wait("wq1")
    g.stamp("wq")
    def kload(i):
        g.issue("k%d" % i, "global_load_lds_dwordx4 v%d, %s offset:%d%s" % (vK[i], P(pK), i * 1024, NT))
    def vload(i):
        g.issue("v%d" % i, "global_load_dwordx4 %s, v%d, %s offset:%d%s" % (V(VV + 4 * i, 4), vV, P(pV), i * 1024, NT))
    kload(0); kload(1)
    a("v_mfma_f32_16x16x32_bf16 %s, %s, %s, 0" % (V(DQ, 4), V(AQ0, 4), V(WQ, 4)))
    a("v_mfma_f32_16x16x32_bf16 %s, %s, %s, %s" % (V(DQ, 4), V(AQ1, 4), V(WQ + 4, 4), V(DQ, 4)))
    vC0 = W + 24
    a("v_and_b32 v1, 15, v%d" % vL)
    a("v_lshlrev_b32 v1, 3, v1")
    a("v_bfe_u32 v%d, v%d, 4, 1" % (vt0, vL))
    a("v_lshl_add_u32 v1, v%d, 2, v1" % vt0)
    a("v_lshrrev_b32 v%d, 5, v%d" % (vt0, vL))
    a("v_add_u32 v1, v1, v%d" % vt0)
    a("v_lshlrev_b32 v%d, 2, v1" % vC0)
    a("s_lshl_b32 s8, s5, 8")
    a("v_add_u32 v%d, s8, v%d" % (vt0, vC0))
    def pair_reduce(D):
        a("v_permlane32_swap_b32 v%d, v%d" % (D, D + 1))
        a("v_permlane32_swap_b32 v%d, v%d" % (D + 2, D + 3))
        a("s_nop 1")
        a("v_add_f32_dpp v%d, v%d, v%d row_ror:8 row_mask:0xf bank_mask:0xf" % (D, D + 1, D))
        a("v_add_f32_dpp v%d, v%d, v%d row_ror:8 row_mask:0xf bank_mask:0xf" % (D + 2, D + 3, D + 2))
    a("s_nop 0")
    pair_reduce(DQ)
    a("s_mov_b32 exec_lo, 0x00ff00ff"); a("s_mov_b32 exec_hi, 0x00ff00ff")
    a("ds_write2_b32 v%d, v%d, v%d offset0:%d offset1:%d" % (vt0, DQ, DQ + 2, (L_QP % 1024) // 4 if False else 0, 2)) if False else None
    a("v_add_u32 v%d, %d, v%d" % (vt0, L_QP, vt0))
    a("ds_write2_b32 v%d, v%d, v%d offset0:0 offset1:2" % (vt0, DQ, DQ + 2))
    a("s_mov_b64 exec, -1")
    a("s_waitcnt lgkmcnt(0)")
    a("s_barrier")
    def sum8(dst, addr, base, stride, tmp):
        a("ds_read_b128 %s, v%d offset:%d" % (V(dst, 4), addr, base))
        for k in range(1, 8):
            a("ds_read_b128 %s, v%d offset:%d" % (V(tmp + 4 * (k - 1), 4), addr, base + k * stride))
        for k in range(1, 8):
            a("s_waitcnt lgkmcnt(%d)" % (7 - k))
            t = tmp + 4 * (k - 1)
            a("v_pk_add_f32 %s, %s, %s" % (V(dst, 2), V(dst, 2), V(t, 2)))
            a("v_pk_add_f32 %s, %s, %s" % (V(dst + 2, 2), V(dst + 2, 2), V(t + 2, 2)))
    def tagit(d):
        for k in range(4):
            a("v_perm_b32 v%d, v%d, v%d, s%d" % (d + k, d + k, vTAG, sSELT))
    T28 = W + 32
    RS = W + 28
    a("s_cmp_lg_u32 s5, 0")
    a("s_cbranch_scc1 L_noqpub")
    a("v_and_b32 v1, 0xf0, v%d" % vX16)
    sum8(RS, 1, L_QP, 256, T28)
    tagit(RS)
    a("s_lshl_b32 s8, s3, 13")
    a("s_bfe_u32 s9, s4, 0x20001")
    a("s_lshl_b32 s9, s9, 11"); a("s_add_u32 s8, s8, s9")
    a("s_lshr_b32 s9, s4, 3"); a("s_lshl_b32 s9, s9, 9"); a("s_add_u32 s8, s8, s9")
    a("s_and_b32 s9, s4, 1"); a("s_lshl_b32 s9, s9, 8"); a("s_add_u32 s8, s8, s9")
    a("s_add_u32 s8, s8, %d" % WS_Q)
    a("v_add_u32 v1, s8, v1")
    a("s_mov_b64 exec, 0xffff")
    a("global_store_dwordx4 v1, %s, %s sc1" % (V(RS, 4), P(pWS)))
    a("s_mov_b64 exec, -1")
    a("L_noqpub:")
    g.stamp("qpub")
    g.wait("up")
    g.stamp("gu")
    kload(2); kload(3)
    a("v_mfma_f32_16x16x32_bf16 %s, %s, %s, 0" % (V(DG, 4), V(AG, 4), V(GT, 4)))
    a("v_mfma_f32_16x16x32_bf16 %s, %s, %s, 0" % (V(DU, 4), V(AG, 4), V(UP, 4)))
    a("s_lshl_b32 s8, s5, 9")
    a("s_add_u32 s8, s8, %d" % L_GP)
    a("v_add_u32 v%d, s8, v%d" % (vt0, vC0))
    a("s_nop 4")
    pair_reduce(DG)
    pair_reduce(DU)
    a("s_mov_b32 exec_lo, 0x00ff00ff"); a("s_mov_b32 exec_hi, 0x00ff00ff")
    a("ds_write2_b32 v%d, v%d, v%d offset0:0 offset1:2" % (vt0, DG, DG + 2))
    a("ds_write2_b32 v%d, v%d, v%d offset0:64 offset1:66" % (vt0, DU, DU + 2))
    a("s_mov_b64 exec, -1")
    a("s_waitcnt lgkmcnt(0)")
    a("s_barrier")
    a("s_cmp_lg_u32 s5, 1")
    a("s_cbranch_scc1 L_nogpub")
    a("s_cmp_eq_u32 s3, 7")
    a("s_cbranch_scc1 L_nogpub")
    a("v_and_b32 v1, 0x1f0, v%d" % vX16)
    sum8(RS, 1, L_GP, 512, T28)
    tagit(RS)
    a("v_and_b32 v1, 15, v%d" % vL)
    a("v_lshlrev_b32 v1, 8, v1")
    a("v_bfe_u32 v%d, v%d, 4, 1" % (vt0, vL))
    a("v_lshl_add_u32 v1, v%d, 7, v1" % vt0)
    a("s_lshl_b32 s8, s3, 2"); a("s_lshr_b32 s9, s4, 3"); a("s_add_u32 s8, s8, s9")
    a("s_lshl_b32 s8, s8, 12")
    a("s_and_b32 s9, s4, 7"); a("s_lshl_b32 s9, s9, 4"); a("s_add_u32 s8, s8, s9")
    a("s_add_u32 s8, s8, %d" % WS_G)
    a("v_add_u32 v1, s8, v1")
    a("s_mov_b32 exec_hi, 0")
    a("global_store_dwordx4 v1, %s, %s sc1" % (V(RS, 4), P(pWS)))
    a("s_mov_b64 exec, -1")
    a("L_nogpub:")
    g.stamp("gpub")
    vPQ, vPG, vPO, vPM = W + 60, W + 61, W + 62, W + 63
    a("v_lshrrev_b32 v1, 4, v%d" % vL)
    a("v_and_b32 v%d, 0xf0, v%d" % (vt0, vX16))
    a("v_lshl_add_u32 v%d, v1, 9, v%d" % (vPQ, vt0))
    a("s_lshl_b32 s8, s3, 13")
    a("s_lshr_b32 s9, s5, 1"); a("s_lshl_b32 s9, s9, 11"); a("s_add_u32 s8, s8, s9")
    a("s_and_b32 s9, s5, 1"); a("s_lshl_b32 s9, s9, 8"); a("s_add_u32 s8, s8, s9")
    a("s_add_u32 s8, s8, %d" % WS_Q)
    a("v_add_u32 v%d, s8, v%d" % (vPQ, vPQ))
    a("s_lshl_b32 s8, s3, 2"); a("s_lshr_b32 s9, s4, 3"); a("s_add_u32 s8, s8, s9")
    a("s_lshl_b32 s8, s8, 12")
    a("s_bfe_u32 s9, s4, 0x10002"); a("s_lshl_b32 s9, s9, 3"); a("s_add_u32 s9, s9, s5")
    a("s_lshl_b32 s10, s9, 8"); a("s_add_u32 s8, s8, s10")
    a("s_add_u32 s8, s8, %d" % WS_G)
    a("v_add_u32 v%d, s8, v%d" % (vPG, vt0))
    a("v_and_b32 v1, 31, v%d" % vL)
    a("v_lshlrev_b32 v1, 5, v1")
    a("v_lshrrev_b32 v%d, 5, v%d" % (vt0, vL))
    a("v_lshl_add_u32 v%d, v%d, 4, v1" % (vPO, vt0))
    a("s_lshl_b32 s8, s3, 16")
    a("s_lshr_b32 s10, s4, 3"); a("s_lshl_b32 s11, s10, 14"); a("s_add_u32 s8, s8, s11")
    a("s_lshl_b32 s11, s9, 10"); a("s_add_u32 s8, s8, s11")
    a("s_add_u32 s8, s8, %d" % WS_O)
    a("v_add_u32 v%d, s8, v%d" % (vPO, vPO))
    a("v_and_b32 v1, 0x1f0, v%d" % vX16)
    a("s_lshl_b32 s8, s3, 11"); a("s_lshl_b32 s11, s10, 9"); a("s_add_u32 s8, s8, s11")
    a("s_add_u32 s8, s8, %d" % WS_M)
    a("v_add_u32 v%d, s8, v1" % vPM)
    def tagcheck(d, t0, t1):
        a("v_perm_b32 v%d, v%d, v%d, s%d" % (t0, d + 1, d, sSELA))
        a("v_perm_b32 v%d, v%d, v%d, s%d" % (t1, d + 3, d + 2, sSELB))
        a("v_or_b32 v%d, v%d, v%d" % (t0, t0, t1))
    def poll(name, loads, regs_, last):
        lb = a.label("L_poll")
        g.wait(last)
        a("%s:" % lb)
        for i, d in enumerate(regs_):
            tagcheck(d, vt0, 1)
            if i == 0:
                a("v_cmp_ne_u32 vcc, s%d, v%d" % (sT4, vt0))
            else:
                a("v_cmp_ne_u32 s[8:9], s%d, v%d" % (sT4, vt0))
                a("s_nop 0")
                a("s_or_b64 vcc, vcc, s[8:9]")
        a("s_cbranch_vccz %s_ok" % lb)
        a("s_add_u32 s%d, s%d, 1" % (sCNT, sCNT))
        a("s_cmp_gt_u32 s%d, %d" % (sCNT, g.spin))
        a("s_cbranch_scc1 %s_ok" % lb)
        for t in loads: a(t)
        a("s_waitcnt vmcnt(0)")
        a("s_branch %s" % lb)
        a("%s_ok:" % lb)
    ldPQ = "global_load_dwordx4 %s, v%d, %s sc1" % (V(PQ, 4), vPQ, P(pWS))
    ldPG = "global_load_dwordx4 %s, v%d, %s sc1" % (V(PG, 4), vPG, P(pWS))
    ldPO = "global_load_dwordx4 %s, v%d, %s sc1" % (V(PO, 4), vPO, P(pWS))
    ldPM = "global_load_dwordx4 %s, v%d, %s sc1" % (V(PM, 4), vPM, P(pWS))
    g.wait("k1")
    g.stamp("k01")
    vload(0); vload(1)
    g.issue("pq", ldPQ)
    g.wait("k3")
    g.stamp("k23")
    vload(2); vload(3)
    poll("pq", [ldPQ], [PQ], "pq")
    g.stamp("pq")
    for k in range(4):
        a("v_and_b32 v%d, s%d, v%d" % (PQ + k, sMASK, PQ + k))
    a("s_nop 0")
    a("v_permlane32_swap_b32 v%d, v%d" % (PQ, PQ + 1))
    a("v_permlane32_swap_b32 v%d, v%d" % (PQ + 2, PQ + 3))
    a("v_add_f32 v%d, v%d, v%d" % (PQ, PQ, PQ + 1))
    a("v_add_f32 v%d, v%d, v%d" % (PQ + 2, PQ + 2, PQ + 3))
    a("v_lshrrev_b32 v1, 4, v%d" % vL)
    a("v_and_b32 v%d, 1, v1" % vt0)
    a("v_permlane16_swap_b32 v%d, v%d" % (PQ, PQ + 2))
    a("v_lshrrev_b32 v1, 1, v1")
    a("v_lshl_add_u32 v1, v%d, 1, v1" % vt0)
    a("v_add_f32 v%d, v%d, v%d" % (PQ, PQ, PQ + 2))
    vPERM = W + 59
    a("v_mov_b32 v%d, v1" % vPERM)
    a("v_and_b32 v%d, 15, v%d" % (vt0, vL))
    a("v_lshl_add_u32 v1, v%d, 2, v1" % vt0)
    a("s_lshl_b32 s8, s5, 6")
    a("v_add_u32 v1, s8, v1")
    a("v_lshlrev_b32 v1, 1, v1")
    a("v_cvt_pk_bf16_f32 v%d, v%d, v%d" % (PQ, PQ, PQ))
    a("ds_write_b16 v1, v%d offset:%d" % (PQ, L_QB))
    KA = W
    a("v_and_b32 v1, 15, v%d" % vL)
    a("v_and_b32 v%d, 3, v1" % vt0)
    a("v_lshlrev_b32 v%d, 2, v%d" % (vt0, vt0))
    a("v_lshrrev_b32 v%d, 2, v1" % KA)
    a("v_add_u32 v%d, v%d, v%d" % (vt0, vt0, KA))
    a("v_lshrrev_b32 v%d, 4, v%d" % (KA, vL))
    a("v_xor_b32 v1, v1, v%d" % KA)
    a("v_lshlrev_b32 v1, 4, v1")
    a("v_lshl_add_u32 v1, v%d, 8, v1" % vt0)
    a("s_lshl_b32 s8, s5, 12")
    a("v_add_u32 v%d, s8, v1" % KA)
    for ks in range(1, 4):
        a("v_xor_b32 v%d, %d, v%d" % (KA + ks, ks << 6, KA))
    KR = W + 4
    for ks in range(4):
        a("ds_read_b128 %s, v%d offset:%d" % (V(KR + 4 * ks, 4), KA + ks, L_K))
    a("v_bfe_u32 v1, v%d, 3, 1" % vL)
    a("v_lshlrev_b32 v1, 8, v1")
    a("v_lshrrev_b32 v%d, 4, v%d" % (vt0, vL))
    a("v_lshl_add_u32 v1, v%d, 4, v1" % vt0)
    a("s_waitcnt lgkmcnt(0)")
    a("s_barrier")
    QO = W + 20
    for h in range(2):
        for ks in range(4):
            a("ds_read_b128 %s, v1 offset:%d" % (V(QO + 16 * h + 4 * ks, 4), L_QB + h * 512 + ks * 64))
    SC = W + 52
    for h in range(2):
        for ks in range(4):
            a("s_waitcnt lgkmcnt(%d)" % (7 - (4 * h + ks)))
            c = "0" if ks == 0 else V(SC + 4 * h, 4)
            a("v_mfma_f32_16x16x32_bf16 %s, %s, %s, %s" % (V(SC + 4 * h, 4), V(KR + 4 * ks, 4), V(QO + 16 * h + 4 * ks, 4), c))
    g.wait("v1")
    g.issue("wo0", "global_load_dwordx4 %s, v%d, %s%s" % (V(WO, 4), vWO, P(pWO), NT))
    g.issue("wo1", "global_load_dwordx4 %s, v%d, %s offset:2048%s" % (V(WO + 4, 4), vWO, P(pWO), NT))
    a("s_nop 4")
    TU = W
    SCALE = f2u(128 ** -0.5)
    for p in range(4):
        r = SC + 2 * p
        a("v_cvt_pk_bf16_f32 v%d, v%d, v%d" % (TU + p, r, r + 1))
    for p in range(4):
        r = SC + 2 * p
        a("v_lshlrev_b32 v%d, 16, v%d" % (r, TU + p))
        a("v_and_b32 v%d, 0xffff0000, v%d" % (r + 1, TU + p))
    for k in range(8):
        a("v_mul_f32 v%d, 0x%x, v%d" % (SC + k, SCALE, SC + k))
    for p in range(4):
        r = SC + 2 * p
        a("v_cvt_pk_bf16_f32 v%d, v%d, v%d" % (TU + p, r, r + 1))
    for p in range(4):
        r = SC + 2 * p
        a("v_lshlrev_b32 v%d, 16, v%d" % (r, TU + p))
        a("v_and_b32 v%d, 0xffff0000, v%d" % (r + 1, TU + p))
    M0, M1 = TU + 4, TU + 5
    for h, m in ((0, M0), (1, M1)):
        a("v_max3_f32 v%d, v%d, v%d, v%d" % (m, SC + 4 * h, SC + 4 * h + 1, SC + 4 * h + 2))
    for h, m in ((0, M0), (1, M1)):
        a("v_max_f32 v%d, v%d, v%d" % (m, m, SC + 4 * h + 3))
    vHS = TU + 6
    a("v_lshrrev_b32 v1, 5, v%d" % vL)
    a("v_bfe_u32 v%d, v%d, 3, 1" % (vt0, vL))
    a("v_permlane32_swap_b32 v%d, v%d" % (M0, M1))
    a("v_lshl_add_u32 v1, v1, 1, v%d" % vt0)
    a("v_max_f32 v%d, v%d, v%d" % (M0, M0, M1))
    a("v_lshlrev_b32 v1, 5, v1")
    a("v_mov_b32 v%d, v%d" % (M1, M0))
    a("s_lshl_b32 s8, s5, 2")
    a("v_add_u32 v%d, s8, v1" % vHS)
    a("v_permlane16_swap_b32 v%d, v%d" % (M0, M1))
    a("v_max_f32 v%d, v%d, v%d" % (M0, M0, M1))
    a("s_mov_b32 exec_lo, 0x101"); a("s_mov_b32 exec_hi, 0x101")
    a("ds_write_b32 v%d, v%d offset:%d" % (vHS, M0, L_MM))
    a("s_mov_b64 exec, -1")
    a("v_lshlrev_b32 v1, 5, v%d" % vt0)
    a("s_waitcnt lgkmcnt(0)")
    a("s_barrier")
    MR = W + 8
    for h in range(2):
        a("ds_read_b128 %s, v1 offset:%d" % (V(MR + 8 * h, 4), L_MM + 64 * h))
        a("ds_read_b128 %s, v1 offset:%d" % (V(MR + 8 * h + 4, 4), L_MM + 64 * h + 16))
    for h, m in ((0, M0), (1, M1)):
        b = MR + 8 * h
        a("s_waitcnt lgkmcnt(%d)" % (2 - 2 * h))
        a("v_max3_f32 v%d, v%d, v%d, v%d" % (m, b, b + 1, b + 2))
        a("v_max3_f32 v%d, v%d, v%d, v%d" % (m, m, b + 3, b + 4))
        a("v_max3_f32 v%d, v%d, v%d, v%d" % (m, m, b + 5, b + 6))
        a("v_max_f32 v%d, v%d, v%d" % (m, m, b + 7))
    for m in (M0, M1):
        a("v_mul_f32 v%d, 0x%x, v%d" % (m, f2u(-LOG2E), m))
    a("s_mov_b32 s8, 0x%x" % f2u(LOG2E))
    for h, m in ((0, M0), (1, M1)):
        for r in range(4):
            a("v_fma_f32 v%d, v%d, s8, v%d" % (SC + 4 * h + r, SC + 4 * h + r, m))
    for k in range(8):
        a("v_exp_f32 v%d, v%d" % (SC + k, SC + k))
    LS0, LS1 = TU + 4, TU + 5
    a("v_add_f32 v%d, v%d, v%d" % (LS0, SC, SC + 1))
    a("v_add_f32 v%d, v%d, v%d" % (LS1, SC + 4, SC + 5))
    a("v_add_f32 v%d, v%d, v%d" % (LS0, LS0, SC + 2))
    a("v_add_f32 v%d, v%d, v%d" % (LS1, LS1, SC + 6))
    a("v_add_f32 v%d, v%d, v%d" % (LS0, LS0, SC + 3))
    a("v_add_f32 v%d, v%d, v%d" % (LS1, LS1, SC + 7))
    AO = QO
    for r in range(4):
        for h in range(2):
            d = AO + 8 * r + 4 * h
            a("v_cvt_pk_bf16_f32 v%d, v%d, v%d" % (d + 3, SC + 4 * h + r, SC + 4 * h + r))
        if r == 0:
            a("v_permlane32_swap_b32 v%d, v%d" % (LS0, LS1))
            a("v_add_f32 v%d, v%d, v%d" % (LS0, LS0, LS1))
            a("v_mov_b32 v%d, v%d" % (LS1, LS0))
        for h in range(2):
            d = AO + 8 * r + 4 * h
            for k in range(4):
                a("v_and_b32 v%d, v%d, v%d" % (d + k, d + 3, MK + k))
        if r == 0:
            a("v_permlane16_swap_b32 v%d, v%d" % (LS0, LS1))
            a("v_add_f32 v%d, v%d, v%d" % (LS0, LS0, LS1))
    a("s_mov_b32 exec_lo, 0x101"); a("s_mov_b32 exec_hi, 0x101")
    a("ds_write_b32 v%d, v%d offset:%d" % (vHS, LS0, L_LL))
    a("s_mov_b64 exec, -1")
    g.stamp("softmax")
    OA = SC
    for r in range(4):
        g.wait("v%d" % r)
        if r == 2:
            g.issue("dn", "global_load_dwordx4 %s, v%d, %s%s" % (V(DN, 4), vDN, P(pDN), NT))
        if r == 3:
            g.issue("pg", ldPG)
        for h in range(2):
            c = "0" if r == 0 else V(OA + 4 * h, 4)
            a("v_mfma_f32_16x16x32_bf16 %s, %s, %s, %s" % (V(OA + 4 * h, 4), V(AO + 8 * r + 4 * h, 4), V(VV + 4 * r, 4), c))
    g.stamp("v")
    a("s_lshl_b32 s8, s5, 11")
    a("v_add_u32 v1, s8, v%d" % vX16)
    a("s_nop 5")
    a("ds_write_b128 v1, %s offset:%d" % (V(OA, 4), L_OP))
    a("ds_write_b128 v1, %s offset:%d" % (V(OA + 4, 4), L_OP + 1024))
    a("s_waitcnt lgkmcnt(0)")
    a("s_barrier")
    a("s_cmp_gt_u32 s5, 2")
    a("s_cbranch_scc1 L_noopub")
    a("s_cmp_eq_u32 s5, 2")
    a("s_cbranch_scc1 L_mlpub")
    a("v_lshlrev_b32 v1, 4, v0")
    sum8(RS, 1, L_OP, 2048, T28)
    tagit(RS)
    a("v_lshrrev_b32 v1, 5, v0")
    a("v_lshlrev_b32 v1, 14, v1")
    a("v_and_b32 v%d, 15, v0" % vt0)
    a("v_lshl_add_u32 v1, v%d, 10, v1" % vt0)
    a("v_bfe_u32 v%d, v0, 4, 1" % vt0)
    a("v_lshl_add_u32 v1, v%d, 4, v1" % vt0)
    a("s_lshl_b32 s8, s3, 16"); a("s_lshl_b32 s9, s4, 5"); a("s_add_u32 s8, s8, s9")
    a("s_add_u32 s8, s8, %d" % WS_O)
    a("v_add_u32 v1, s8, v1")
    a("global_store_dwordx4 v1, %s, %s sc1" % (V(RS, 4), P(pWS)))
    a("s_branch L_noopub")
    a("L_mlpub:")
    a("v_and_b32 v1, 3, v%d" % vL)
    a("v_lshlrev_b32 v1, 5, v1")
    a("ds_read_b128 %s, v1 offset:%d" % (V(T28, 4), L_LL))
    a("ds_read_b128 %s, v1 offset:%d" % (V(T28 + 4, 4), L_LL + 16))
    a("ds_read_b128 %s, v1 offset:%d" % (V(T28 + 8, 4), L_MM))
    a("ds_read_b128 %s, v1 offset:%d" % (V(T28 + 12, 4), L_MM + 16))
    a("s_waitcnt lgkmcnt(0)")
    b = T28
    a("v_add_f32 v%d, v%d, v%d" % (RS + 1, b, b + 1))
    for k in range(2, 8):
        a("v_add_f32 v%d, v%d, v%d" % (RS + 1, RS + 1, b + k))
    b = T28 + 8
    a("v_max3_f32 v%d, v%d, v%d, v%d" % (RS, b, b + 1, b + 2))
    a("v_max3_f32 v%d, v%d, v%d, v%d" % (RS, RS, b + 3, b + 4))
    a("v_max3_f32 v%d, v%d, v%d, v%d" % (RS, RS, b + 5, b + 6))
    a("v_max_f32 v%d, v%d, v%d" % (RS, RS, b + 7))
    a("v_mul_f32 v%d, 0x%x, v%d" % (RS, f2u(LOG2E), RS))
    a("v_mov_b32 v%d, 0" % (RS + 2)); a("v_mov_b32 v%d, 0" % (RS + 3))
    tagit(RS)
    a("v_lshlrev_b32 v1, 4, v1")
    a("s_lshl_b32 s8, s3, 11"); a("s_lshl_b32 s9, s4, 4"); a("s_add_u32 s8, s8, s9")
    a("s_add_u32 s8, s8, %d" % WS_M)
    a("v_add_u32 v1, s8, v1")
    a("s_mov_b64 exec, 15")
    a("global_store_dwordx4 v1, %s, %s sc1" % (V(RS, 4), P(pWS)))
    a("s_mov_b64 exec, -1")
    a("L_noopub:")
    g.stamp("opub")
    HA = W
    a("s_cmp_eq_u32 s3, 7")
    a("s_cbranch_scc1 L_noB")
    poll("pg", [ldPG], [PG], "pg")
    g.stamp("pg")
    H = W + 4
    a("v_cndmask_b32 v%d, v%d, v%d, %s" % (H, PG, PG + 1, P(sROW1)))
    a("v_cndmask_b32 v%d, v%d, v%d, %s" % (H, H, PG + 2, P(sROW2)))
    a("v_cndmask_b32 v%d, v%d, v%d, %s" % (H, H, PG + 3, P(sROW3)))
    a("v_and_b32 v%d, s%d, v%d" % (H, sMASK, H))
    for mod in ("quad_perm:[1,0,3,2]", "quad_perm:[2,3,0,1]", "row_half_mirror"):
        a("s_nop 1")
        a("v_add_f32_dpp v%d, v%d, v%d %s row_mask:0xf bank_mask:0xf" % (H, H, H, mod))
    a("v_cvt_pk_bf16_f32 v%d, v%d, v%d" % (H, H, H))
    a("v_and_b32 v%d, 0xffff0000, v%d" % (H, H))
    k0 = 0.7978845608028654; k1 = 0.044715
    a("v_mul_f32 v%d, v%d, v%d" % (H + 2, H, H))
    a("v_mov_b32_dpp v%d, v%d row_ror:8 row_mask:0xf bank_mask:0xf" % (H + 1, H)) if False else None
    a("v_mul_f32 v%d, 0x%x, v%d" % (H + 2, f2u(k1), H + 2))
    a("v_mov_b32_dpp v%d, v%d row_ror:8 row_mask:0xf bank_mask:0xf" % (H + 1, H))
    a("v_fma_f32 v%d, v%d, v%d, v%d" % (H + 2, H + 2, H, H))
    a("v_mul_f32 v%d, 0x%x, v%d" % (H + 2, f2u(-2 * k0 * LOG2E), H + 2))
    a("v_exp_f32 v%d, v%d" % (H + 2, H + 2))
    a("s_nop 0")
    a("v_add_f32 v%d, 1.0, v%d" % (H + 2, H + 2))
    a("v_rcp_f32 v%d, v%d" % (H + 2, H + 2))
    a("s_nop 0")
    a("v_mul_f32 v%d, v%d, v%d" % (H + 2, H + 2, H))
    a("v_cvt_pk_bf16_f32 v%d, v%d, v%d" % (H + 2, H + 2, H + 2))
    a("v_and_b32 v%d, 0xffff0000, v%d" % (H + 2, H + 2))
    a("v_mul_f32 v%d, v%d, v%d" % (H + 2, H + 2, H + 1))
    a("v_cvt_pk_bf16_f32 v%d, v%d, v%d" % (HA + 3, H + 2, H + 2))
    for k in range(4):
        a("v_and_b32 v%d, v%d, v%d" % (HA + k, HA + 3, MK + k))
    a("s_branch L_Bdone")
    a("L_noB:")
    for k in range(4):
        a("v_mov_b32 v%d, 0" % (HA + k))
    a("L_Bdone:")
    g.q = [x for x in g.q]
    g.issue("po", ldPO)
    g.issue("pm", ldPM)
    poll("po", [ldPO, ldPM], [PO, PM], "pm")
    g.stamp("po")
    Mx, Tm, Wt, Lr = W + 8, W + 9, W + 10, W + 11
    a("v_and_b32 v%d, s%d, v%d" % (PM, sMASK, PM))
    a("v_and_b32 v%d, s%d, v%d" % (PM + 1, sMASK, PM + 1))
    a("v_and_b32 v%d, s%d, v%d" % (PO, sMASK, PO))
    a("v_max_f32_dpp v%d, v%d, v%d row_ror:8 row_mask:0xf bank_mask:0xf" % (Mx, PM, PM))
    a("v_and_b32 v%d, s%d, v%d" % (PO + 1, sMASK, PO + 1))
    a("v_and_b32 v%d, s%d, v%d" % (PO + 2, sMASK, PO + 2))
    a("v_max_f32_dpp v%d, v%d, v%d row_ror:4 row_mask:0xf bank_mask:0xf" % (Mx, Mx, Mx))
    a("v_and_b32 v%d, s%d, v%d" % (PO + 3, sMASK, PO + 3))
    a("s_nop 0")
    a("v_max_f32_dpp v%d, v%d, v%d row_ror:2 row_mask:0xf bank_mask:0xf" % (Mx, Mx, Mx))
    a("s_nop 1")
    a("v_max_f32_dpp v%d, v%d, v%d row_ror:1 row_mask:0xf bank_mask:0xf" % (Mx, Mx, Mx))
    a("v_mov_b32 v%d, v%d" % (Tm, Mx))
    a("s_nop 1")
    a("v_permlane16_swap_b32 v%d, v%d" % (Mx, Tm))
    a("v_max_f32 v%d, v%d, v%d" % (Mx, Mx, Tm))
    a("v_sub_f32 v%d, v%d, v%d" % (Wt, PM, Mx))
    a("v_exp_f32 v%d, v%d" % (Wt, Wt))
    a("s_nop 0")
    a("v_mul_f32 v%d, v%d, v%d" % (Lr, Wt, PM + 1))
    for k in range(4):
        a("v_mul_f32 v%d, v%d, v%d" % (PO + k, PO + k, Wt))
    a("v_mov_b32 v%d, v%d" % (Tm, Lr))
    a("s_nop 0")
    a("v_permlane16_swap_b32 v%d, v%d" % (PO, PO + 1))
    a("v_permlane16_swap_b32 v%d, v%d" % (PO + 2, PO + 3))
    a("v_permlane16_swap_b32 v%d, v%d" % (Lr, Tm))
    a("v_add_f32 v%d, v%d, v%d" % (PO, PO, PO + 1))
    a("v_add_f32 v%d, v%d, v%d" % (PO + 2, PO + 2, PO + 3))
    a("v_add_f32 v%d, v%d, v%d" % (Lr, Lr, Tm))
    for rot in (8, 4, 2, 1):
        for r in (PO, PO + 2, Lr):
            a("v_add_f32_dpp v%d, v%d, v%d row_ror:%d row_mask:0xf bank_mask:0xf" % (r, r, r, rot))
    a("v_rcp_f32 v%d, v%d" % (Lr, Lr))
    a("s_nop 0")
    OA0, OA1 = W + 12, W + 16
    a("v_mul_f32 v%d, v%d, v%d" % (PO, PO, Lr))
    a("v_mul_f32 v%d, v%d, v%d" % (PO + 2, PO + 2, Lr))
    a("v_cvt_pk_bf16_f32 v%d, v%d, v%d" % (OA0 + 3, PO, PO))
    a("v_cvt_pk_bf16_f32 v%d, v%d, v%d" % (OA1 + 3, PO + 2, PO + 2))
    for k in range(4):
        a("v_and_b32 v%d, v%d, v%d" % (OA0 + k, OA0 + 3, MK + k))
    for k in range(4):
        a("v_and_b32 v%d, v%d, v%d" % (OA1 + k, OA1 + 3, MK + k))
    DO = W + 20
    g.wait("dn"); g.wait("wo1")
    a("v_mfma_f32_16x16x32_bf16 %s, %s, %s, 0" % (V(DO, 4), V(HA, 4), V(DN, 4)))
    a("v_mfma_f32_16x16x32_bf16 %s, %s, %s, %s" % (V(DO, 4), V(OA0, 4), V(WO, 4), V(DO, 4)))
    a("v_mfma_f32_16x16x32_bf16 %s, %s, %s, %s" % (V(DO, 4), V(OA1, 4), V(WO + 4, 4), V(DO, 4)))
    a("s_lshl_b32 s8, s5, 9")
    a("v_add_u32 v1, s8, v%d" % vX16)
    a("s_mov_b32 exec_hi, 0")
    a("s_nop 5")
    a("ds_write_b128 v1, %s offset:%d" % (V(DO, 4), L_PP))
    a("s_mov_b64 exec, -1")
    a("s_waitcnt lgkmcnt(0)")
    a("s_barrier")
    g.stamp("wo")
    a("s_cmp_lg_u32 s5, 0")
    a("s_cbranch_scc1 L_end")
    a("v_and_b32 v1, 0x1f0, v%d" % vX16)
    sum8(RS, 1, L_PP, 512, T28)
    tagit(RS)
    a("v_and_b32 v1, 15, v%d" % vL)
    a("v_lshlrev_b32 v1, 11, v1")
    a("v_bfe_u32 v%d, v%d, 4, 1" % (vt0, vL))
    a("v_lshl_add_u32 v1, v%d, 10, v1" % vt0)
    a("s_lshl_b32 s8, s%d, 15" % sCB4); a("s_lshl_b32 s9, s%d, 4" % sRBW); a("s_add_u32 s8, s8, s9")
    a("s_add_u32 s8, s8, %d" % WS_P)
    a("v_add_u32 v1, s8, v1")
    a("s_mov_b32 exec_hi, 0")
    a("global_store_dwordx4 v1, %s, %s sc1" % (V(RS, 4), P(pWS)))
    a("s_mov_b64 exec, -1")
    g.stamp("ppub")
    a("s_cmp_ge_u32 s2, 128")
    a("s_cbranch_scc1 L_fin")
    PF = PQ
    vPF = W + 60
    a("s_lshl_b32 s8, s2, 10")
    a("s_add_u32 s8, s8, %d" % WS_P)
    a("v_add_u32 v%d, s8, v%d" % (vPF, vX16))
    ldPF = "global_load_dwordx4 %s, v%d, %s sc1" % (V(PF, 4), vPF, P(pWS))
    g.q = []
    g.issue("pf", ldPF)
    a("v_lshrrev_b32 v1, 4, v%d" % vL)
    a("v_and_b32 v%d, 1, v1" % vt0)
    a("v_lshrrev_b32 v1, 1, v1")
    a("v_lshl_add_u32 v1, v%d, 1, v1" % vt0)
    a("s_lshl_b32 s8, s2, 2")
    a("v_add_u32 v1, s8, v1")
    a("v_lshlrev_b32 v%d, 1, v1" % (W + 61))
    a("ds_read_u16 v%d, v%d offset:%d" % (W + 62, W + 61, L_XR))
    poll("pf", [ldPF], [PF], "pf")
    g.stamp("pf")
    for k in range(4):
        a("v_and_b32 v%d, s%d, v%d" % (PF + k, sMASK, PF + k))
    a("s_nop 0")
    a("v_permlane32_swap_b32 v%d, v%d" % (PF, PF + 1))
    a("v_permlane32_swap_b32 v%d, v%d" % (PF + 2, PF + 3))
    a("v_add_f32 v%d, v%d, v%d" % (PF, PF, PF + 1))
    a("v_add_f32 v%d, v%d, v%d" % (PF + 2, PF + 2, PF + 3))
    a("s_nop 1")
    a("v_permlane16_swap_b32 v%d, v%d" % (PF, PF + 2))
    a("v_add_f32 v%d, v%d, v%d" % (PF, PF, PF + 2))
    for rot in (8, 4, 2, 1):
        a("s_nop 1")
        a("v_add_f32_dpp v%d, v%d, v%d row_ror:%d row_mask:0xf bank_mask:0xf" % (PF, PF, PF, rot))
    a("s_waitcnt lgkmcnt(0)")
    a("v_lshlrev_b32 v%d, 16, v%d" % (W + 62, W + 62))
    a("v_add_f32 v%d, v%d, v%d" % (PF, PF, W + 62))
    a("v_cvt_pk_bf16_f32 v%d, v%d, v%d" % (PF, PF, PF))
    a("s_mov_b32 exec_lo, 0x00010001"); a("s_mov_b32 exec_hi, 0x00010001")
    a("global_store_short v%d, v%d, %s" % (W + 61, PF, P(pOUT)))
    a("s_mov_b64 exec, -1")
    a("s_cmp_lg_u32 s2, 0")
    a("s_cbranch_scc1 L_fin")
    a("v_mov_b32 v1, 0"); a("v_mov_b32 v%d, s%d" % (vt0, sE))
    a("s_mov_b64 exec, 1")
    a("global_store_dword v1, v%d, %s sc1" % (vt0, P(pWS)))
    a("s_mov_b64 exec, -1")
    a("L_fin:")
    if stamps:
        g.stamp("end")
    body_stamp = ""
    if stamps:
        pass
    a("L_end:") if not stamps else None
    if stamps:
        a("L_end:")
        a("s_cmp_ge_u32 s2, 256")
        a("s_cbranch_scc1 L_end2")
        a("s_waitcnt lgkmcnt(0) vmcnt(0)")
        a("s_lshl_b32 s8, s2, 3"); a("s_add_u32 s8, s8, s5"); a("s_lshl_b32 s8, s8, 8"); a("s_add_u32 s8, s8, %d" % WS_ST)
        a("v_mov_b32 v1, s8")
        a("s_mov_b64 exec, 1")
        for k in range(21):
            a("v_mov_b32 v4, s%d" % (58 + 2 * k)); a("v_mov_b32 v5, s%d" % (59 + 2 * k))
            a("global_store_dwordx2 v1, v[4:5], %s offset:%d" % (P(pWS), 8 * k))
        a("L_end2:")
    text = a.text()
    probs = hazard.check(text, verbose=True)
    return wrap(text, 256, 512, LDS_BYTES, 152, 100), g.stnames

if __name__ == "__main__":
    t, names = gen(stamps=False)
    open("v2.s", "w").write(t)
    t, names = gen(stamps=True)
    open("v2_st.s", "w").write(t)
    open("v2_st.names", "w").write(" ".join(names))
    print(names)
```

```python
import sys, struct
from asmgen import *
import hazard

LOG2E = 1.4426950408889634
def f2u(f):
    return struct.unpack("<I", struct.pack("<f", f))[0]

WS_E = 0
WS_Q = 0x10000
WS_G = 0x20000
WS_O = 0x40000
WS_M = 0xC0000
WS_P = 0xD0000
WS_ST = 0x200000
L_K = 0
L_XN = 32768
L_XR = 33792
L_QP = 34816
L_GP = 36864
L_QB = 40960
L_MM = 41984
L_LL = 42112
L_OP = 43008
L_PP = 59392
LDS_BYTES = 63488

class G:
    def __init__(self, stamps=False, prefetch_code=True, nt=True, spin=200000):
        self.a = Asm()
        self.stamps = stamps
        self.nst = 0
        self.stnames = []
        self.q = []
        self.nt = " nt" if nt else ""
        self.prefetch_code = prefetch_code
        self.spin = spin
    def stamp(self, name):
        if not self.stamps: return
        k = self.nst; self.nst += 1
        assert k < 21
        self.stnames.append(name)
        self.a("s_memrealtime s[%d:%d]" % (58 + 2 * k, 59 + 2 * k))
    def issue(self, name, text):
        self.a(text); self.q.append(name)
    def wait(self, name, lgkm=False):
        if name not in self.q:
            if lgkm: self.a("s_waitcnt lgkmcnt(0)")
            return
        i = self.q.index(name)
        n = len(self.q) - 1 - i
        self.a("s_waitcnt vmcnt(%d)%s" % (n, " lgkmcnt(0)" if lgkm else ""))
        self.q = self.q[i + 1:]

def gen(stamps=False, nt=True, prefetch_code=True, sched="A", delay=0):
    g = G(stamps=stamps, nt=nt, prefetch_code=prefetch_code)
    a = g.a
    NT = g.nt
    sJ, sG, sS, sW = 2, 3, 4, 5
    pX, pK, pV, pWQ, pWO, pGT, pUP, pDN, pOUT, pDBG, pWS = 16, 18, 20, 22, 24, 28, 30, 32, 34, 36, 38
    sE, sT4, sSELA, sSELB, sSELT, sMASK = 40, 41, 42, 43, 44, 45
    sROW1, sROW2, sROW3 = 46, 48, 50
    sCNT = 52
    sRBW, sCB4 = 53, 54
    sT = [6, 7, 8, 9, 10, 11, 12, 13, 14, 15]
    sC, sS1, sS2 = 55, 56, 57
    def P(p): return "s[%d:%d]" % (p, p + 1)
    vL, vX16, vWQ0, vWQ1, vGU = 2, 3, 4, 5, 6
    vK = [7, 8, 9, 10]
    vV, vWO, vDN = 11, 12, 13
    MK = 14
    vTAG = 18
    vt0, vt1 = 19, 1
    X, WQ, GT, UP, VV, WO, DN = 20, 24, 32, 36, 40, 56, 64
    PQ, PG, PO, PM = 68, 72, 76, 80
    W = 84
    def V(r, n=1): return "v%d" % r if n == 1 else "v[%d:%d]" % (r, r + n - 1)

    a("s_cmp_ge_u32 s2, 256")
    a("s_cbranch_scc1 L_end")
    g.stamp("entry")
    a("s_load_dwordx16 s[16:31], s[0:1], 0")
    a("s_load_dwordx8 s[32:39], s[0:1], 64")
    a("v_lshrrev_b32 v1, 6, v0")
    a("v_and_b32 v%d, 63, v0" % vL)
    a("s_and_b32 s3, s2, 7")
    a("v_readfirstlane_b32 s5, v1")
    a("s_lshr_b32 s4, s2, 3")
    a("v_lshlrev_b32 v%d, 4, v%d" % (vX16, vL))
    a("v_lshrrev_b32 v1, 3, v%d" % vL)
    a("v_and_b32 v%d, 0x70, v%d" % (vt0, vX16))
    a("v_lshl_add_u32 v%d, v1, 13, v%d" % (vWQ0, vt0))
    a("v_mul_u32_u24 v%d, 3584, v1" % vGU)
    a("v_add_u32 v%d, v%d, v%d" % (vGU, vGU, vt0))
    a("s_lshr_b32 s6, s4, 3")
    a("s_and_b32 s7, s4, 7")
    a("s_lshl_b32 s8, s6, 20")
    a("s_lshl_b32 s9, s5, 17")
    a("s_add_u32 s8, s8, s9")
    a("s_lshl_b32 s9, s3, 10")
    a("s_add_u32 s8, s8, s9")
    a("s_lshl_b32 s9, s7, 7")
    a("s_add_u32 s8, s8, s9")
    a("v_add_u32 v%d, s8, v%d" % (vWQ0, vWQ0))
    a("v_add_u32 v%d, 0x10000, v%d" % (vWQ1, vWQ0))
    a("s_mul_i32 s8, s7, 229376")
    a("s_mul_i32 s9, s5, 28672")
    a("s_add_u32 s8, s8, s9")
    a("s_lshl_b32 s9, s3, 9")
    a("s_add_u32 s8, s8, s9")
    a("s_lshl_b32 s9, s6, 7")
    a("s_add_u32 s8, s8, s9")
    a("v_add_u32 v%d, s8, v%d" % (vGU, vGU))
    a("s_lshl_b32 s%d, s3, 3" % sRBW)
    a("s_lshr_b32 s9, s4, 2")
    a("s_add_u32 s%d, s%d, s9" % (sRBW, sRBW))
    a("s_and_b32 s%d, s4, 3" % sCB4)
    a("s_waitcnt lgkmcnt(0)")
    g.stamp("karg")
    a("v_mov_b32 v1, 0")
    g.issue("e", "global_load_dword v149, v1, %s sc1" % P(pWS))
    g.issue("x", "global_load_dwordx4 %s, v%d, %s" % (V(X, 4), vX16, P(pX)))
    g.issue("wq0", "global_load_dwordx4 %s, v%d, %s%s" % (V(WQ, 4), vWQ0, P(pWQ), NT))
    g.issue("wq1", "global_load_dwordx4 %s, v%d, %s%s" % (V(WQ + 4, 4), vWQ1, P(pWQ), NT))
    a("v_lshrrev_b32 v1, 4, v%d" % vL)
    a("v_and_b32 v%d, 0xf0, v%d" % (vt0, vX16))
    a("v_lshl_add_u32 v%d, v1, 10, v%d" % (vDN, vt0))
    a("s_lshl_b32 s8, s%d, 15" % sRBW)
    a("s_lshl_b32 s9, s5, 12")
    a("s_add_u32 s8, s8, s9")
    a("s_lshl_b32 s9, s%d, 8" % sCB4)
    a("s_add_u32 s8, s8, s9")
    a("v_add_u32 v%d, s8, v%d" % (vDN, vDN))
    a("s_cmp_lg_u32 s3, 7")
    a("s_cbranch_scc1 L_hasB")
    a("s_mov_b64 %s, %s" % (P(pGT), P(pX)))
    a("s_mov_b64 %s, %s" % (P(pUP), P(pX)))
    a("s_mov_b64 %s, %s" % (P(pDN), P(pX)))
    a("v_mov_b32 v%d, v%d" % (vGU, vX16))
    a("v_mov_b32 v%d, v%d" % (vDN, vX16))
    a("L_hasB:")
    g.issue("gt", "global_load_dwordx4 %s, v%d, %s%s" % (V(GT, 4), vGU, P(pGT), NT))
    g.issue("up", "global_load_dwordx4 %s, v%d, %s%s" % (V(UP, 4), vGU, P(pUP), NT))
    g.stamp("issue0")
    if prefetch_code:
        a("s_cmp_lt_u32 s2, 16")
        a("s_cbranch_scc0 L_nopf")
        a("s_cmp_eq_u32 s5, 7")
        a("s_cbranch_scc0 L_nopf")
        a("s_getpc_b64 s[8:9]")
        a("L_pc:")
        a("v_lshlrev_b32 v1, 7, v%d" % vL)
        a("v_min_u32 v1, L_end-L_pc, v1")
        a("global_load_dword v148, v1, s[8:9]")
        a("L_nopf:")
    a("s_lshl_b32 s8, s3, 24")
    a("s_lshl_b32 s9, s4, 15")
    a("s_add_u32 s8, s8, s9")
    a("s_lshl_b32 s9, s5, 12")
    a("s_add_u32 s8, s8, s9")
    a("s_add_u32 s8, s8, %d" % (61440 * 256))
    a("v_add_u32 v%d, s8, v%d" % (vV, vX16))
    a("v_lshrrev_b32 v1, 4, v%d" % vL)
    a("v_lshlrev_b32 v%d, 6, v1" % vt0)
    a("v_and_b32 v%d, 0xf0, v%d" % (vK[0], vX16))
    a("v_xor_b32 v%d, v%d, v%d" % (vK[0], vK[0], vt0))
    a("v_lshl_add_u32 v%d, v1, 8, v%d" % (vK[0], vK[0]))
    for i in range(1, 4):
        a("v_xor_b32 v%d, %d, v%d" % (vK[i], i << 4, vK[0]))
    for i in range(4):
        a("v_add_u32 v%d, s8, v%d" % (vK[i], vK[i]))
    a("v_and_b32 v%d, 1, v1" % vt0)
    a("v_lshrrev_b32 v1, 1, v1")
    a("v_lshl_add_u32 v1, v1, 2, v%d" % vt0)
    a("v_and_b32 v%d, 0xf0, v%d" % (vt0, vX16))
    a("v_lshl_add_u32 v%d, v1, 10, v%d" % (vWO, vt0))
    a("s_lshl_b32 s8, s%d, 16" % sRBW)
    a("s_lshl_b32 s9, s5, 13")
    a("s_add_u32 s8, s8, s9")
    a("s_lshl_b32 s9, s%d, 8" % sCB4)
    a("s_add_u32 s8, s8, s9")
    a("v_add_u32 v%d, s8, v%d" % (vWO, vWO))
    a("v_and_b32 v1, 1, v%d" % vL)
    a("v_lshlrev_b32 v1, 4, v1")
    a("v_mov_b32 v%d, 0xffff" % vt0)
    a("v_lshlrev_b32 v%d, v1, v%d" % (vt0, vt0))
    a("v_bfe_u32 v1, v%d, 1, 2" % vL)
    for r in range(4):
        a("v_cmp_eq_u32 vcc, %d, v1" % r)
        a("s_nop 1")
        a("v_cndmask_b32 v%d, 0, v%d, vcc" % (MK + r, vt0))
    a("s_mov_b32 s%d, 0x0c0c0400" % sSELA)
    a("s_mov_b32 s%d, 0x04000c0c" % sSELB)
    a("s_mov_b32 s%d, 0x07060500" % sSELT)
    a("s_mov_b32 s%d, 0xffffff00" % sMASK)
    a("s_mov_b32 s%d, 0xffff0000" % sROW1); a("s_mov_b32 s%d, 0" % (sROW1 + 1))
    a("s_mov_b32 s%d, 0" % sROW2); a("s_mov_b32 s%d, 0xffff" % (sROW2 + 1))
    a("s_mov_b32 s%d, 0" % sROW3); a("s_mov_b32 s%d, 0xffff0000" % (sROW3 + 1))
    a("s_mov_b32 s%d, 0" % sCNT)
    a("s_lshl_b32 s8, s5, 12")
    a("s_mov_b32 m0, s8")

    def unpack(dst, src, n):
        for k in range(n):
            a("v_lshlrev_b32 v%d, 16, v%d" % (dst + 2 * k, src + k))
            a("v_and_b32 v%d, 0xffff0000, v%d" % (dst + 2 * k + 1, src + k))
    g.wait("x", lgkm=True)
    g.stamp("x")
    a("v_readfirstlane_b32 s%d, v149" % sE)
    a("s_nop 0")
    a("s_add_u32 s%d, s%d, 1" % (sE, sE))
    a("s_and_b32 s8, s%d, 0xff" % sE)
    a("s_mul_i32 s%d, s8, 0x01010101" % sT4)
    a("v_mov_b32 v%d, s8" % vTAG)
    XF = W; D8 = W + 8; S1 = W + 16; S2 = W + 17; A_ = W + 18; B_ = W + 19
    unpack(XF, X, 4)
    a("v_readfirstlane_b32 s%d, v%d" % (sC, XF))
    a("ds_write_b128 v%d, %s offset:%d" % (vX16, V(X, 4), L_XR))
    a("s_nop 0")
    for k in range(8):
        a("v_subrev_f32 v%d, s%d, v%d" % (D8 + k, sC, XF + k))
    a("v_add_f32 v%d, v%d, v%d" % (S1, D8, D8 + 1))
    a("v_mul_f32 v%d, v%d, v%d" % (S2, D8, D8))
    for k in range(1, 8):
        if k > 1: a("v_add_f32 v%d, v%d, v%d" % (S1, S1, D8 + k))
        a("v_fmac_f32 v%d, v%d, v%d" % (S2, D8 + k, D8 + k))
    for mod in ("row_shr:1 row_mask:0xf bank_mask:0xf bound_ctrl:0", "row_shr:2 row_mask:0xf bank_mask:0xf bound_ctrl:0",
                "row_shr:4 row_mask:0xf bank_mask:0xf bound_ctrl:0", "row_shr:8 row_mask:0xf bank_mask:0xf bound_ctrl:0",
                "row_bcast:15 row_mask:0xa bank_mask:0xf", "row_bcast:31 row_mask:0xc bank_mask:0xf"):
        a("s_nop 0")
        a("v_add_f32_dpp v%d, v%d, v%d %s" % (S1, S1, S1, mod))
        a("v_add_f32_dpp v%d, v%d, v%d %s" % (S2, S2, S2, mod))
    a("s_nop 0")
    a("v_readlane_b32 s%d, v%d, 63" % (sS1, S1))
    a("v_readlane_b32 s%d, v%d, 63" % (sS2, S2))
    a("s_nop 0")
    a("v_mov_b32 v%d, 0x%x" % (A_, f2u(1.0 / 512)))
    a("v_mul_f32 v%d, s%d, v%d" % (B_, sS2, A_))
    a("v_mul_f32 v%d, s%d, v%d" % (A_, sS1, A_))
    a("v_fma_f32 v%d, -v%d, v%d, v%d" % (B_, A_, A_, B_))
    a("v_add_f32 v%d, s%d, v%d" % (A_, sC, A_))
    a("v_max_f32 v%d, 0, v%d" % (B_, B_))
    a("v_cvt_pk_bf16_f32 v%d, v%d, v%d" % (A_, A_, B_))
    a("v_and_b32 v%d, 0xffff0000, v%d" % (B_, A_))
    a("v_lshlrev_b32 v%d, 16, v%d" % (A_, A_))
    a("v_add_f32 v%d, 0x%x, v%d" % (B_, f2u(1e-5), B_))
    a("v_cvt_pk_bf16_f32 v%d, v%d, v%d" % (B_, B_, B_))
    a("v_and_b32 v%d, 0xffff0000, v%d" % (B_, B_))
    a("v_sqrt_f32 v%d, v%d" % (B_, B_))
    for k in range(8):
        a("v_sub_f32 v%d, v%d, v%d" % (XF + k, XF + k, A_))
    a("v_cvt_pk_bf16_f32 v%d, v%d, v%d" % (B_, B_, B_))
    a("v_and_b32 v%d, 0xffff0000, v%d" % (B_, B_))
    a("v_rcp_f32 v%d, v%d" % (B_, B_))
    for k in range(4):
        a("v_cvt_pk_bf16_f32 v%d, v%d, v%d" % (D8 + k, XF + 2 * k, XF + 2 * k + 1))
    unpack(XF, D8, 4)
    for k in range(8):
        a("v_mul_f32 v%d, v%d, v%d" % (XF + k, XF + k, B_))
    for k in range(4):
        a("v_cvt_pk_bf16_f32 v%d, v%d, v%d" % (D8 + k, XF + 2 * k, XF + 2 * k + 1))
    a("ds_write_b128 v%d, %s offset:%d" % (vX16, V(D8, 4), L_XN))
    a("v_lshrrev_b32 v1, 3, v%d" % vL)
    a("v_lshlrev_b32 v1, 1, v1")
    a("s_lshr_b32 s6, s4, 3")
    a("s_lshl_b32 s8, s6, 8")
    a("s_lshl_b32 s9, s5, 5")
    a("s_add_u32 s8, s8, s9")
    a("v_add_u32 v%d, s8, v1" % vt0)
    a("s_and_b32 s7, s4, 7")
    a("s_lshl_b32 s8, s7, 7")
    a("s_lshl_b32 s9, s5, 4")
    a("s_add_u32 s8, s8, s9")
    a("v_add_u32 v1, s8, v1")
    a("s_waitcnt lgkmcnt(0)")
    AQ0, AQ1, AG = W, W + 4, W + 8
    a("ds_read_u16 v%d, v%d offset:%d" % (AQ0 + 3, vt0, L_XN))
    a("ds_read_u16 v%d, v%d offset:%d" % (AQ1 + 3, vt0, L_XN + 16))
    a("ds_read_u16 v%d, v1 offset:%d" % (AG + 3, L_XN))
    a("s_waitcnt lgkmcnt(0)")
    def onehot(dst):
        a("v_lshl_or_b32 v%d, v%d, 16, v%d" % (dst + 3, dst + 3, dst + 3))
        for k in range(4):
            a("v_and_b32 v%d, v%d, v%d" % (dst + k, dst + 3, MK + k))
    onehot(AQ0); onehot(AQ1); onehot(AG)
    g.stamp("ln")
    DQ = W + 12; DG = W + 16; DU = W + 20
    g.wait("wq1")
    g.stamp("wq")
    def kload(i):
        g.issue("k%d" % i, "global_load_lds_dwordx4 v%d, %s offset:%d%s" % (vK[i], P(pK), i * 1024, NT))
    def vload(i):
        g.issue("v%d" % i, "global_load_dwordx4 %s, v%d, %s offset:%d%s" % (V(VV + 4 * i, 4), vV, P(pV), i * 1024, NT))
    kload(0); kload(1)
    a("v_mfma_f32_16x16x32_bf16 %s, %s, %s, 0" % (V(DQ, 4), V(AQ0, 4), V(WQ, 4)))
    a("v_mfma_f32_16x16x32_bf16 %s, %s, %s, %s" % (V(DQ, 4), V(AQ1, 4), V(WQ + 4, 4), V(DQ, 4)))
    vC0 = W + 24
    a("v_and_b32 v1, 15, v%d" % vL)
    a("v_lshlrev_b32 v1, 3, v1")
    a("v_bfe_u32 v%d, v%d, 4, 1" % (vt0, vL))
    a("v_lshl_add_u32 v1, v%d, 2, v1" % vt0)
    a("v_lshrrev_b32 v%d, 5, v%d" % (vt0, vL))
    a("v_add_u32 v1, v1, v%d" % vt0)
    a("v_lshlrev_b32 v%d, 2, v1" % vC0)
    a("s_lshl_b32 s8, s5, 8")
    a("v_add_u32 v%d, s8, v%d" % (vt0, vC0))
    def pair_reduce(D):
        a("v_permlane32_swap_b32 v%d, v%d" % (D, D + 1))
        a("v_permlane32_swap_b32 v%d, v%d" % (D + 2, D + 3))
        a("s_nop 1")
        a("v_add_f32_dpp v%d, v%d, v%d row_ror:8 row_mask:0xf bank_mask:0xf" % (D, D + 1, D))
        a("v_add_f32_dpp v%d, v%d, v%d row_ror:8 row_mask:0xf bank_mask:0xf" % (D + 2, D + 3, D + 2))
    a("s_nop 0")
    pair_reduce(DQ)
    a("s_mov_b32 exec_lo, 0x00ff00ff"); a("s_mov_b32 exec_hi, 0x00ff00ff")
    a("ds_write2_b32 v%d, v%d, v%d offset0:%d offset1:%d" % (vt0, DQ, DQ + 2, (L_QP % 1024) // 4 if False else 0, 2)) if False else None
    a("v_add_u32 v%d, %d, v%d" % (vt0, L_QP, vt0))
    a("ds_write2_b32 v%d, v%d, v%d offset0:0 offset1:2" % (vt0, DQ, DQ + 2))
    a("s_mov_b64 exec, -1")
    a("s_waitcnt lgkmcnt(0)")
    a("s_barrier")
    def sum8(dst, addr, base, stride, tmp):
        a("ds_read_b128 %s, v%d offset:%d" % (V(dst, 4), addr, base))
        for k in range(1, 8):
            a("ds_read_b128 %s, v%d offset:%d" % (V(tmp + 4 * (k - 1), 4), addr, base + k * stride))
        for k in range(1, 8):
            a("s_waitcnt lgkmcnt(%d)" % (7 - k))
            t = tmp + 4 * (k - 1)
            a("v_pk_add_f32 %s, %s, %s" % (V(dst, 2), V(dst, 2), V(t, 2)))
            a("v_pk_add_f32 %s, %s, %s" % (V(dst + 2, 2), V(dst + 2, 2), V(t + 2, 2)))
    def tagit(d):
        for k in range(4):
            a("v_perm_b32 v%d, v%d, v%d, s%d" % (d + k, d + k, vTAG, sSELT))
    T28 = W + 32
    RS = W + 28
    a("s_cmp_lg_u32 s5, 0")
    a("s_cbranch_scc1 L_noqpub")
    a("v_and_b32 v1, 0xf0, v%d" % vX16)
    sum8(RS, 1, L_QP, 256, T28)
    tagit(RS)
    a("s_lshl_b32 s8, s3, 13")
    a("s_bfe_u32 s9, s4, 0x20001")
    a("s_lshl_b32 s9, s9, 11"); a("s_add_u32 s8, s8, s9")
    a("s_lshr_b32 s9, s4, 3"); a("s_lshl_b32 s9, s9, 9"); a("s_add_u32 s8, s8, s9")
    a("s_and_b32 s9, s4, 1"); a("s_lshl_b32 s9, s9, 8"); a("s_add_u32 s8, s8, s9")
    a("s_add_u32 s8, s8, %d" % WS_Q)
    a("v_add_u32 v1, s8, v1")
    a("s_mov_b64 exec, 0xffff")
    a("global_store_dwordx4 v1, %s, %s sc1" % (V(RS, 4), P(pWS)))
    a("s_mov_b64 exec, -1")
    a("L_noqpub:")
    g.stamp("qpub")
    g.wait("up")
    g.stamp("gu")
    kload(2); kload(3)
    a("v_mfma_f32_16x16x32_bf16 %s, %s, %s, 0" % (V(DG, 4), V(AG, 4), V(GT, 4)))
    a("v_mfma_f32_16x16x32_bf16 %s, %s, %s, 0" % (V(DU, 4), V(AG, 4), V(UP, 4)))
    a("s_lshl_b32 s8, s5, 9")
    a("s_add_u32 s8, s8, %d" % L_GP)
    a("v_add_u32 v%d, s8, v%d" % (vt0, vC0))
    a("s_nop 4")
    pair_reduce(DG)
    pair_reduce(DU)
    a("s_mov_b32 exec_lo, 0x00ff00ff"); a("s_mov_b32 exec_hi, 0x00ff00ff")
    a("ds_write2_b32 v%d, v%d, v%d offset0:0 offset1:2" % (vt0, DG, DG + 2))
    a("ds_write2_b32 v%d, v%d, v%d offset0:64 offset1:66" % (vt0, DU, DU + 2))
    a("s_mov_b64 exec, -1")
    a("s_waitcnt lgkmcnt(0)")
    a("s_barrier")
    a("s_cmp_lg_u32 s5, 1")
    a("s_cbranch_scc1 L_nogpub")
    a("s_cmp_eq_u32 s3, 7")
    a("s_cbranch_scc1 L_nogpub")
    a("v_and_b32 v1, 0x1f0, v%d" % vX16)
    sum8(RS, 1, L_GP, 512, T28)
    tagit(RS)
    a("v_and_b32 v1, 15, v%d" % vL)
    a("v_lshlrev_b32 v1, 8, v1")
    a("v_bfe_u32 v%d, v%d, 4, 1" % (vt0, vL))
    a("v_lshl_add_u32 v1, v%d, 7, v1" % vt0)
    a("s_lshl_b32 s8, s3, 2"); a("s_lshr_b32 s9, s4, 3"); a("s_add_u32 s8, s8, s9")
    a("s_lshl_b32 s8, s8, 12")
    a("s_and_b32 s9, s4, 7"); a("s_lshl_b32 s9, s9, 4"); a("s_add_u32 s8, s8, s9")
    a("s_add_u32 s8, s8, %d" % WS_G)
    a("v_add_u32 v1, s8, v1")
    a("s_mov_b32 exec_hi, 0")
    a("global_store_dwordx4 v1, %s, %s sc1" % (V(RS, 4), P(pWS)))
    a("s_mov_b64 exec, -1")
    a("L_nogpub:")
    g.stamp("gpub")
    vPQ, vPG, vPO, vPM = W + 60, W + 61, W + 62, W + 63
    a("v_lshrrev_b32 v1, 4, v%d" % vL)
    a("v_and_b32 v%d, 0xf0, v%d" % (vt0, vX16))
    a("v_lshl_add_u32 v%d, v1, 9, v%d" % (vPQ, vt0))
    a("s_lshl_b32 s8, s3, 13")
    a("s_lshr_b32 s9, s5, 1"); a("s_lshl_b32 s9, s9, 11"); a("s_add_u32 s8, s8, s9")
    a("s_and_b32 s9, s5, 1"); a("s_lshl_b32 s9, s9, 8"); a("s_add_u32 s8, s8, s9")
    a("s_add_u32 s8, s8, %d" % WS_Q)
    a("v_add_u32 v%d, s8, v%d" % (vPQ, vPQ))
    a("s_lshl_b32 s8, s3, 2"); a("s_lshr_b32 s9, s4, 3"); a("s_add_u32 s8, s8, s9")
    a("s_lshl_b32 s8, s8, 12")
    a("s_bfe_u32 s9, s4, 0x10002"); a("s_lshl_b32 s9, s9, 3"); a("s_add_u32 s9, s9, s5")
    a("s_lshl_b32 s10, s9, 8"); a("s_add_u32 s8, s8, s10")
    a("s_add_u32 s8, s8, %d" % WS_G)
    a("v_add_u32 v%d, s8, v%d" % (vPG, vt0))
    a("v_and_b32 v1, 31, v%d" % vL)
    a("v_lshlrev_b32 v1, 5, v1")
    a("v_lshrrev_b32 v%d, 5, v%d" % (vt0, vL))
    a("v_lshl_add_u32 v%d, v%d, 4, v1" % (vPO, vt0))
    a("s_lshl_b32 s8, s3, 16")
    a("s_lshr_b32 s10, s4, 3"); a("s_lshl_b32 s11, s10, 14"); a("s_add_u32 s8, s8, s11")
    a("s_lshl_b32 s11, s9, 10"); a("s_add_u32 s8, s8, s11")
    a("s_add_u32 s8, s8, %d" % WS_O)
    a("v_add_u32 v%d, s8, v%d" % (vPO, vPO))
    a("v_and_b32 v1, 0x1f0, v%d" % vX16)
    a("s_lshl_b32 s8, s3, 11"); a("s_lshl_b32 s11, s10, 9"); a("s_add_u32 s8, s8, s11")
    a("s_add_u32 s8, s8, %d" % WS_M)
    a("v_add_u32 v%d, s8, v1" % vPM)
    def tagcheck(d, t0, t1):
        a("v_perm_b32 v%d, v%d, v%d, s%d" % (t0, d + 1, d, sSELA))
        a("v_perm_b32 v%d, v%d, v%d, s%d" % (t1, d + 3, d + 2, sSELB))
        a("v_or_b32 v%d, v%d, v%d" % (t0, t0, t1))
    def poll(name, loads, regs_, last):
        lb = a.label("L_poll")
        g.wait(last)
        a("%s:" % lb)
        for i, d in enumerate(regs_):
            tagcheck(d, vt0, 1)
            if i == 0:
                a("v_cmp_ne_u32 vcc, s%d, v%d" % (sT4, vt0))
            else:
                a("v_cmp_ne_u32 s[8:9], s%d, v%d" % (sT4, vt0))
                a("s_nop 0")
                a("s_or_b64 vcc, vcc, s[8:9]")
        a("s_cbranch_vccz %s_ok" % lb)
        a("s_add_u32 s%d, s%d, 1" % (sCNT, sCNT))
        a("s_cmp_gt_u32 s%d, %d" % (sCNT, g.spin))
        a("s_cbranch_scc1 %s_ok" % lb)
        for t in loads: a(t)
        a("s_waitcnt vmcnt(0)")
        a("s_branch %s" % lb)
        a("%s_ok:" % lb)
    ldPQ = "global_load_dwordx4 %s, v%d, %s sc1" % (V(PQ, 4), vPQ, P(pWS))
    ldPG = "global_load_dwordx4 %s, v%d, %s sc1" % (V(PG, 4), vPG, P(pWS))
    ldPO = "global_load_dwordx4 %s, v%d, %s sc1" % (V(PO, 4), vPO, P(pWS))
    ldPM = "global_load_dwordx4 %s, v%d, %s sc1" % (V(PM, 4), vPM, P(pWS))
    g.wait("k1")
    g.stamp("k01")
    vload(0); vload(1)
    g.issue("pq", ldPQ)
    g.wait("k3")
    g.stamp("k23")
    vload(2); vload(3)
    poll("pq", [ldPQ], [PQ], "pq")
    g.stamp("pq")
    for k in range(4):
        a("v_and_b32 v%d, s%d, v%d" % (PQ + k, sMASK, PQ + k))
    a("s_nop 0")
    a("v_permlane32_swap_b32 v%d, v%d" % (PQ, PQ + 1))
    a("v_permlane32_swap_b32 v%d, v%d" % (PQ + 2, PQ + 3))
    a("v_add_f32 v%d, v%d, v%d" % (PQ, PQ, PQ + 1))
    a("v_add_f32 v%d, v%d, v%d" % (PQ + 2, PQ + 2, PQ + 3))
    a("v_lshrrev_b32 v1, 4, v%d" % vL)
    a("v_and_b32 v%d, 1, v1" % vt0)
    a("v_permlane16_swap_b32 v%d, v%d" % (PQ, PQ + 2))
    a("v_lshrrev_b32 v1, 1, v1")
    a("v_lshl_add_u32 v1, v%d, 1, v1" % vt0)
    a("v_add_f32 v%d, v%d, v%d" % (PQ, PQ, PQ + 2))
    vPERM = W + 59
    a("v_mov_b32 v%d, v1" % vPERM)
    a("v_and_b32 v%d, 15, v%d" % (vt0, vL))
    a("v_lshl_add_u32 v1, v%d, 2, v1" % vt0)
    a("s_lshl_b32 s8, s5, 6")
    a("v_add_u32 v1, s8, v1")
    a("v_lshlrev_b32 v1, 1, v1")
    a("v_cvt_pk_bf16_f32 v%d, v%d, v%d" % (PQ, PQ, PQ))
    a("ds_write_b16 v1, v%d offset:%d" % (PQ, L_QB))
    KA = W
    a("v_and_b32 v1, 15, v%d" % vL)
    a("v_and_b32 v%d, 3, v1" % vt0)
    a("v_lshlrev_b32 v%d, 2, v%d" % (vt0, vt0))
    a("v_lshrrev_b32 v%d, 2, v1" % KA)
    a("v_add_u32 v%d, v%d, v%d" % (vt0, vt0, KA))
    a("v_lshrrev_b32 v%d, 4, v%d" % (KA, vL))
    a("v_xor_b32 v1, v1, v%d" % KA)
    a("v_lshlrev_b32 v1, 4, v1")
    a("v_lshl_add_u32 v1, v%d, 8, v1" % vt0)
    a("s_lshl_b32 s8, s5, 12")
    a("v_add_u32 v%d, s8, v1" % KA)
    for ks in range(1, 4):
        a("v_xor_b32 v%d, %d, v%d" % (KA + ks, ks << 6, KA))
    KR = W + 4
    for ks in range(4):
        a("ds_read_b128 %s, v%d offset:%d" % (V(KR + 4 * ks, 4), KA + ks, L_K))
    a("v_bfe_u32 v1, v%d, 3, 1" % vL)
    a("v_lshlrev_b32 v1, 8, v1")
    a("v_lshrrev_b32 v%d, 4, v%d" % (vt0, vL))
    a("v_lshl_add_u32 v1, v%d, 4, v1" % vt0)
    a("s_waitcnt lgkmcnt(0)")
    a("s_barrier")
    QO = W + 20
    for h in range(2):
        for ks in range(4):
            a("ds_read_b128 %s, v1 offset:%d" % (V(QO + 16 * h + 4 * ks, 4), L_QB + h * 512 + ks * 64))
    SC = W + 52
    for h in range(2):
        for ks in range(4):
            a("s_waitcnt lgkmcnt(%d)" % (7 - (4 * h + ks)))
            c = "0" if ks == 0 else V(SC + 4 * h, 4)
            a("v_mfma_f32_16x16x32_bf16 %s, %s, %s, %s" % (V(SC + 4 * h, 4), V(KR + 4 * ks, 4), V(QO + 16 * h + 4 * ks, 4), c))
    g.wait("v1")
    g.issue("wo0", "global_load_dwordx4 %s, v%d, %s%s" % (V(WO, 4), vWO, P(pWO), NT))
    g.issue("wo1", "global_load_dwordx4 %s, v%d, %s offset:2048%s" % (V(WO + 4, 4), vWO, P(pWO), NT))
    a("s_nop 4")
    TU = W
    SCALE = f2u(128 ** -0.5)
    for p in range(4):
        r = SC + 2 * p
        a("v_cvt_pk_bf16_f32 v%d, v%d, v%d" % (TU + p, r, r + 1))
    for p in range(4):
        r = SC + 2 * p
        a("v_lshlrev_b32 v%d, 16, v%d" % (r, TU + p))
        a("v_and_b32 v%d, 0xffff0000, v%d" % (r + 1, TU + p))
    for k in range(8):
        a("v_mul_f32 v%d, 0x%x, v%d" % (SC + k, SCALE, SC + k))
    for p in range(4):
        r = SC + 2 * p
        a("v_cvt_pk_bf16_f32 v%d, v%d, v%d" % (TU + p, r, r + 1))
    for p in range(4):
        r = SC + 2 * p
        a("v_lshlrev_b32 v%d, 16, v%d" % (r, TU + p))
        a("v_and_b32 v%d, 0xffff0000, v%d" % (r + 1, TU + p))
    M0, M1 = TU + 4, TU + 5
    for h, m in ((0, M0), (1, M1)):
        a("v_max3_f32 v%d, v%d, v%d, v%d" % (m, SC + 4 * h, SC + 4 * h + 1, SC + 4 * h + 2))
    for h, m in ((0, M0), (1, M1)):
        a("v_max_f32 v%d, v%d, v%d" % (m, m, SC + 4 * h + 3))
    vHS = TU + 6
    a("v_lshrrev_b32 v1, 5, v%d" % vL)
    a("v_bfe_u32 v%d, v%d, 3, 1" % (vt0, vL))
    a("v_permlane32_swap_b32 v%d, v%d" % (M0, M1))
    a("v_lshl_add_u32 v1, v1, 1, v%d" % vt0)
    a("v_max_f32 v%d, v%d, v%d" % (M0, M0, M1))
    a("v_lshlrev_b32 v1, 5, v1")
    a("v_mov_b32 v%d, v%d" % (M1, M0))
    a("s_lshl_b32 s8, s5, 2")
    a("v_add_u32 v%d, s8, v1" % vHS)
    a("v_permlane16_swap_b32 v%d, v%d" % (M0, M1))
    a("v_max_f32 v%d, v%d, v%d" % (M0, M0, M1))
    a("s_mov_b32 exec_lo, 0x101"); a("s_mov_b32 exec_hi, 0x101")
    a("ds_write_b32 v%d, v%d offset:%d" % (vHS, M0, L_MM))
    a("s_mov_b64 exec, -1")
    a("v_lshlrev_b32 v1, 5, v%d" % vt0)
    a("s_waitcnt lgkmcnt(0)")
    a("s_barrier")
    MR = W + 8
    for h in range(2):
        a("ds_read_b128 %s, v1 offset:%d" % (V(MR + 8 * h, 4), L_MM + 64 * h))
        a("ds_read_b128 %s, v1 offset:%d" % (V(MR + 8 * h + 4, 4), L_MM + 64 * h + 16))
    for h, m in ((0, M0), (1, M1)):
        b = MR + 8 * h
        a("s_waitcnt lgkmcnt(%d)" % (2 - 2 * h))
        a("v_max3_f32 v%d, v%d, v%d, v%d" % (m, b, b + 1, b + 2))
        a("v_max3_f32 v%d, v%d, v%d, v%d" % (m, m, b + 3, b + 4))
        a("v_max3_f32 v%d, v%d, v%d, v%d" % (m, m, b + 5, b + 6))
        a("v_max_f32 v%d, v%d, v%d" % (m, m, b + 7))
    for m in (M0, M1):
        a("v_mul_f32 v%d, 0x%x, v%d" % (m, f2u(-LOG2E), m))
    a("s_mov_b32 s8, 0x%x" % f2u(LOG2E))
    for h, m in ((0, M0), (1, M1)):
        for r in range(4):
            a("v_fma_f32 v%d, v%d, s8, v%d" % (SC + 4 * h + r, SC + 4 * h + r, m))
    for k in range(8):
        a("v_exp_f32 v%d, v%d" % (SC + k, SC + k))
    LS0, LS1 = TU + 4, TU + 5
    a("v_add_f32 v%d, v%d, v%d" % (LS0, SC, SC + 1))
    a("v_add_f32 v%d, v%d, v%d" % (LS1, SC + 4, SC + 5))
    a("v_add_f32 v%d, v%d, v%d" % (LS0, LS0, SC + 2))
    a("v_add_f32 v%d, v%d, v%d" % (LS1, LS1, SC + 6))
    a("v_add_f32 v%d, v%d, v%d" % (LS0, LS0, SC + 3))
    a("v_add_f32 v%d, v%d, v%d" % (LS1, LS1, SC + 7))
    AO = QO
    for r in range(4):
        for h in range(2):
            d = AO + 8 * r + 4 * h
            a("v_cvt_pk_bf16_f32 v%d, v%d, v%d" % (d + 3, SC + 4 * h + r, SC + 4 * h + r))
        if r == 0:
            a("v_permlane32_swap_b32 v%d, v%d" % (LS0, LS1))
            a("v_add_f32 v%d, v%d, v%d" % (LS0, LS0, LS1))
            a("v_mov_b32 v%d, v%d" % (LS1, LS0))
        for h in range(2):
            d = AO + 8 * r + 4 * h
            for k in range(4):
                a("v_and_b32 v%d, v%d, v%d" % (d + k, d + 3, MK + k))
        if r == 0:
            a("v_permlane16_swap_b32 v%d, v%d" % (LS0, LS1))
            a("v_add_f32 v%d, v%d, v%d" % (LS0, LS0, LS1))
    a("s_mov_b32 exec_lo, 0x101"); a("s_mov_b32 exec_hi, 0x101")
    a("ds_write_b32 v%d, v%d offset:%d" % (vHS, LS0, L_LL))
    a("s_mov_b64 exec, -1")
    g.stamp("softmax")
    OA = SC
    for r in range(4):
        g.wait("v%d" % r)
        if r == 2:
            g.issue("dn", "global_load_dwordx4 %s, v%d, %s%s" % (V(DN, 4), vDN, P(pDN), NT))
        if r == 3:
            g.issue("pg", ldPG)
        for h in range(2):
            c = "0" if r == 0 else V(OA + 4 * h, 4)
            a("v_mfma_f32_16x16x32_bf16 %s, %s, %s, %s" % (V(OA + 4 * h, 4), V(AO + 8 * r + 4 * h, 4), V(VV + 4 * r, 4), c))
    g.stamp("v")
    a("s_lshl_b32 s8, s5, 11")
    a("v_add_u32 v1, s8, v%d" % vX16)
    a("s_nop 5")
    a("ds_write_b128 v1, %s offset:%d" % (V(OA, 4), L_OP))
    a("ds_write_b128 v1, %s offset:%d" % (V(OA + 4, 4), L_OP + 1024))
    a("s_waitcnt lgkmcnt(0)")
    a("s_barrier")
    a("s_cmp_gt_u32 s5, 2")
    a("s_cbranch_scc1 L_noopub")
    a("s_cmp_eq_u32 s5, 2")
    a("s_cbranch_scc1 L_mlpub")
    a("v_lshlrev_b32 v1, 4, v0")
    sum8(RS, 1, L_OP, 2048, T28)
    tagit(RS)
    a("v_lshrrev_b32 v1, 5, v0")
    a("v_lshlrev_b32 v1, 14, v1")
    a("v_and_b32 v%d, 15, v0" % vt0)
    a("v_lshl_add_u32 v1, v%d, 10, v1" % vt0)
    a("v_bfe_u32 v%d, v0, 4, 1" % vt0)
    a("v_lshl_add_u32 v1, v%d, 4, v1" % vt0)
    a("s_lshl_b32 s8, s3, 16"); a("s_lshl_b32 s9, s4, 5"); a("s_add_u32 s8, s8, s9")
    a("s_add_u32 s8, s8, %d" % WS_O)
    a("v_add_u32 v1, s8, v1")
    a("global_store_dwordx4 v1, %s, %s sc1" % (V(RS, 4), P(pWS)))
    a("s_branch L_noopub")
    a("L_mlpub:")
    a("v_and_b32 v1, 3, v%d" % vL)
    a("v_lshlrev_b32 v1, 5, v1")
    a("ds_read_b128 %s, v1 offset:%d" % (V(T28, 4), L_LL))
    a("ds_read_b128 %s, v1 offset:%d" % (V(T28 + 4, 4), L_LL + 16))
    a("ds_read_b128 %s, v1 offset:%d" % (V(T28 + 8, 4), L_MM))
    a("ds_read_b128 %s, v1 offset:%d" % (V(T28 + 12, 4), L_MM + 16))
    a("s_waitcnt lgkmcnt(0)")
    b = T28
    a("v_add_f32 v%d, v%d, v%d" % (RS + 1, b, b + 1))
    for k in range(2, 8):
        a("v_add_f32 v%d, v%d, v%d" % (RS + 1, RS + 1, b + k))
    b = T28 + 8
    a("v_max3_f32 v%d, v%d, v%d, v%d" % (RS, b, b + 1, b + 2))
    a("v_max3_f32 v%d, v%d, v%d, v%d" % (RS, RS, b + 3, b + 4))
    a("v_max3_f32 v%d, v%d, v%d, v%d" % (RS, RS, b + 5, b + 6))
    a("v_max_f32 v%d, v%d, v%d" % (RS, RS, b + 7))
    a("v_mul_f32 v%d, 0x%x, v%d" % (RS, f2u(LOG2E), RS))
    a("v_mov_b32 v%d, 0" % (RS + 2)); a("v_mov_b32 v%d, 0" % (RS + 3))
    tagit(RS)
    a("v_lshlrev_b32 v1, 4, v1")
    a("s_lshl_b32 s8, s3, 11"); a("s_lshl_b32 s9, s4, 4"); a("s_add_u32 s8, s8, s9")
    a("s_add_u32 s8, s8, %d" % WS_M)
    a("v_add_u32 v1, s8, v1")
    a("s_mov_b64 exec, 15")
    a("global_store_dwordx4 v1, %s, %s sc1" % (V(RS, 4), P(pWS)))
    a("s_mov_b64 exec, -1")
    a("L_noopub:")
    g.stamp("opub")
    HA = W
    a("s_cmp_eq_u32 s3, 7")
    a("s_cbranch_scc1 L_noB")
    poll("pg", [ldPG], [PG], "pg")
    g.stamp("pg")
    H = W + 4
    a("v_cndmask_b32 v%d, v%d, v%d, %s" % (H, PG, PG + 1, P(sROW1)))
    a("v_cndmask_b32 v%d, v%d, v%d, %s" % (H, H, PG + 2, P(sROW2)))
    a("v_cndmask_b32 v%d, v%d, v%d, %s" % (H, H, PG + 3, P(sROW3)))
    a("v_and_b32 v%d, s%d, v%d" % (H, sMASK, H))
    for mod in ("quad_perm:[1,0,3,2]", "quad_perm:[2,3,0,1]", "row_half_mirror"):
        a("s_nop 1")
        a("v_add_f32_dpp v%d, v%d, v%d %s row_mask:0xf bank_mask:0xf" % (H, H, H, mod))
    a("v_cvt_pk_bf16_f32 v%d, v%d, v%d" % (H, H, H))
    a("v_and_b32 v%d, 0xffff0000, v%d" % (H, H))
    k0 = 0.7978845608028654; k1 = 0.044715
    a("v_mul_f32 v%d, v%d, v%d" % (H + 2, H, H))
    a("v_mov_b32_dpp v%d, v%d row_ror:8 row_mask:0xf bank_mask:0xf" % (H + 1, H)) if False else None
    a("v_mul_f32 v%d, 0x%x, v%d" % (H + 2, f2u(k1), H + 2))
    a("v_mov_b32_dpp v%d, v%d row_ror:8 row_mask:0xf bank_mask:0xf" % (H + 1, H))
    a("v_fma_f32 v%d, v%d, v%d, v%d" % (H + 2, H + 2, H, H))
    a("v_mul_f32 v%d, 0x%x, v%d" % (H + 2, f2u(-2 * k0 * LOG2E), H + 2))
    a("v_exp_f32 v%d, v%d" % (H + 2, H + 2))
    a("s_nop 0")
    a("v_add_f32 v%d, 1.0, v%d" % (H + 2, H + 2))
    a("v_rcp_f32 v%d, v%d" % (H + 2, H + 2))
    a("s_nop 0")
    a("v_mul_f32 v%d, v%d, v%d" % (H + 2, H + 2, H))
    a("v_cvt_pk_bf16_f32 v%d, v%d, v%d" % (H + 2, H + 2, H + 2))
    a("v_and_b32 v%d, 0xffff0000, v%d" % (H + 2, H + 2))
    a("v_mul_f32 v%d, v%d, v%d" % (H + 2, H + 2, H + 1))
    a("v_cvt_pk_bf16_f32 v%d, v%d, v%d" % (HA + 3, H + 2, H + 2))
    for k in range(4):
        a("v_and_b32 v%d, v%d, v%d" % (HA + k, HA + 3, MK + k))
    a("s_branch L_Bdone")
    a("L_noB:")
    for k in range(4):
        a("v_mov_b32 v%d, 0" % (HA + k))
    a("L_Bdone:")
    g.q = [x for x in g.q]
    g.issue("po", ldPO)
    g.issue("pm", ldPM)
    poll("po", [ldPO, ldPM], [PO, PM], "pm")
    g.stamp("po")
    Mx, Tm, Wt, Lr = W + 8, W + 9, W + 10, W + 11
    a("v_and_b32 v%d, s%d, v%d" % (PM, sMASK, PM))
    a("v_and_b32 v%d, s%d, v%d" % (PM + 1, sMASK, PM + 1))
    a("v_and_b32 v%d, s%d, v%d" % (PO, sMASK, PO))
    a("v_max_f32_dpp v%d, v%d, v%d row_ror:8 row_mask:0xf bank_mask:0xf" % (Mx, PM, PM))
    a("v_and_b32 v%d, s%d, v%d" % (PO + 1, sMASK, PO + 1))
    a("v_and_b32 v%d, s%d, v%d" % (PO + 2, sMASK, PO + 2))
    a("v_max_f32_dpp v%d, v%d, v%d row_ror:4 row_mask:0xf bank_mask:0xf" % (Mx, Mx, Mx))
    a("v_and_b32 v%d, s%d, v%d" % (PO + 3, sMASK, PO + 3))
    a("s_nop 0")
    a("v_max_f32_dpp v%d, v%d, v%d row_ror:2 row_mask:0xf bank_mask:0xf" % (Mx, Mx, Mx))
    a("s_nop 1")
    a("v_max_f32_dpp v%d, v%d, v%d row_ror:1 row_mask:0xf bank_mask:0xf" % (Mx, Mx, Mx))
    a("v_mov_b32 v%d, v%d" % (Tm, Mx))
    a("s_nop 1")
    a("v_permlane16_swap_b32 v%d, v%d" % (Mx, Tm))
    a("v_max_f32 v%d, v%d, v%d" % (Mx, Mx, Tm))
    a("v_sub_f32 v%d, v%d, v%d" % (Wt, PM, Mx))
    a("v_exp_f32 v%d, v%d" % (Wt, Wt))
    a("s_nop 0")
    a("v_mul_f32 v%d, v%d, v%d" % (Lr, Wt, PM + 1))
    for k in range(4):
        a("v_mul_f32 v%d, v%d, v%d" % (PO + k, PO + k, Wt))
    a("v_mov_b32 v%d, v%d" % (Tm, Lr))
    a("s_nop 0")
    a("v_permlane16_swap_b32 v%d, v%d" % (PO, PO + 1))
    a("v_permlane16_swap_b32 v%d, v%d" % (PO + 2, PO + 3))
    a("v_permlane16_swap_b32 v%d, v%d" % (Lr, Tm))
    a("v_add_f32 v%d, v%d, v%d" % (PO, PO, PO + 1))
    a("v_add_f32 v%d, v%d, v%d" % (PO + 2, PO + 2, PO + 3))
    a("v_add_f32 v%d, v%d, v%d" % (Lr, Lr, Tm))
    for rot in (8, 4, 2, 1):
        for r in (PO, PO + 2, Lr):
            a("v_add_f32_dpp v%d, v%d, v%d row_ror:%d row_mask:0xf bank_mask:0xf" % (r, r, r, rot))
    a("v_rcp_f32 v%d, v%d" % (Lr, Lr))
    a("s_nop 0")
    OA0, OA1 = W + 12, W + 16
    a("v_mul_f32 v%d, v%d, v%d" % (PO, PO, Lr))
    a("v_mul_f32 v%d, v%d, v%d" % (PO + 2, PO + 2, Lr))
    a("v_cvt_pk_bf16_f32 v%d, v%d, v%d" % (OA0 + 3, PO, PO))
    a("v_cvt_pk_bf16_f32 v%d, v%d, v%d" % (OA1 + 3, PO + 2, PO + 2))
    for k in range(4):
        a("v_and_b32 v%d, v%d, v%d" % (OA0 + k, OA0 + 3, MK + k))
    for k in range(4):
        a("v_and_b32 v%d, v%d, v%d" % (OA1 + k, OA1 + 3, MK + k))
    DO = W + 20
    g.wait("dn"); g.wait("wo1")
    a("v_mfma_f32_16x16x32_bf16 %s, %s, %s, 0" % (V(DO, 4), V(HA, 4), V(DN, 4)))
    a("v_mfma_f32_16x16x32_bf16 %s, %s, %s, %s" % (V(DO, 4), V(OA0, 4), V(WO, 4), V(DO, 4)))
    a("v_mfma_f32_16x16x32_bf16 %s, %s, %s, %s" % (V(DO, 4), V(OA1, 4), V(WO + 4, 4), V(DO, 4)))
    a("s_lshl_b32 s8, s5, 9")
    a("v_add_u32 v1, s8, v%d" % vX16)
    a("s_mov_b32 exec_hi, 0")
    a("s_nop 5")
    a("ds_write_b128 v1, %s offset:%d" % (V(DO, 4), L_PP))
    a("s_mov_b64 exec, -1")
    a("s_waitcnt lgkmcnt(0)")
    a("s_barrier")
    g.stamp("wo")
    a("s_cmp_lg_u32 s5, 0")
    a("s_cbranch_scc1 L_end")
    a("v_and_b32 v1, 0x1f0, v%d" % vX16)
    sum8(RS, 1, L_PP, 512, T28)
    tagit(RS)
    a("v_and_b32 v1, 15, v%d" % vL)
    a("v_lshlrev_b32 v1, 11, v1")
    a("v_bfe_u32 v%d, v%d, 4, 1" % (vt0, vL))
    a("v_lshl_add_u32 v1, v%d, 10, v1" % vt0)
    a("s_lshl_b32 s8, s%d, 15" % sCB4); a("s_lshl_b32 s9, s%d, 4" % sRBW); a("s_add_u32 s8, s8, s9")
    a("s_add_u32 s8, s8, %d" % WS_P)
    a("v_add_u32 v1, s8, v1")
    a("s_mov_b32 exec_hi, 0")
    a("global_store_dwordx4 v1, %s, %s sc1" % (V(RS, 4), P(pWS)))
    a("s_mov_b64 exec, -1")
    g.stamp("ppub")
    a("s_cmp_ge_u32 s2, 128")
    a("s_cbranch_scc1 L_fin")
    PF = PQ
    vPF = W + 60
    a("s_lshl_b32 s8, s2, 10")
    a("s_add_u32 s8, s8, %d" % WS_P)
    a("v_add_u32 v%d, s8, v%d" % (vPF, vX16))
    ldPF = "global_load_dwordx4 %s, v%d, %s sc1" % (V(PF, 4), vPF, P(pWS))
    g.q = []
    g.issue("pf", ldPF)
    a("v_lshrrev_b32 v1, 4, v%d" % vL)
    a("v_and_b32 v%d, 1, v1" % vt0)
    a("v_lshrrev_b32 v1, 1, v1")
    a("v_lshl_add_u32 v1, v%d, 1, v1" % vt0)
    a("s_lshl_b32 s8, s2, 2")
    a("v_add_u32 v1, s8, v1")
    a("v_lshlrev_b32 v%d, 1, v1" % (W + 61))
    a("ds_read_u16 v%d, v%d offset:%d" % (W + 62, W + 61, L_XR))
    poll("pf", [ldPF], [PF], "pf")
    g.stamp("pf")
    for k in range(4):
        a("v_and_b32 v%d, s%d, v%d" % (PF + k, sMASK, PF + k))
    a("s_nop 0")
    a("v_permlane32_swap_b32 v%d, v%d" % (PF, PF + 1))
    a("v_permlane32_swap_b32 v%d, v%d" % (PF + 2, PF + 3))
    a("v_add_f32 v%d, v%d, v%d" % (PF, PF, PF + 1))
    a("v_add_f32 v%d, v%d, v%d" % (PF + 2, PF + 2, PF + 3))
    a("s_nop 1")
    a("v_permlane16_swap_b32 v%d, v%d" % (PF, PF + 2))
    a("v_add_f32 v%d, v%d, v%d" % (PF, PF, PF + 2))
    for rot in (8, 4, 2, 1):
        a("s_nop 1")
        a("v_add_f32_dpp v%d, v%d, v%d row_ror:%d row_mask:0xf bank_mask:0xf" % (PF, PF, PF, rot))
    a("s_waitcnt lgkmcnt(0)")
    a("v_lshlrev_b32 v%d, 16, v%d" % (W + 62, W + 62))
    a("v_add_f32 v%d, v%d, v%d" % (PF, PF, W + 62))
    a("v_cvt_pk_bf16_f32 v%d, v%d, v%d" % (PF, PF, PF))
    a("s_mov_b32 exec_lo, 0x00010001"); a("s_mov_b32 exec_hi, 0x00010001")
    a("global_store_short v%d, v%d, %s" % (W + 61, PF, P(pOUT)))
    a("s_mov_b64 exec, -1")
    a("s_cmp_lg_u32 s2, 0")
    a("s_cbranch_scc1 L_fin")
    a("v_mov_b32 v1, 0"); a("v_mov_b32 v%d, s%d" % (vt0, sE))
    a("s_mov_b64 exec, 1")
    a("global_store_dword v1, v%d, %s sc1" % (vt0, P(pWS)))
    a("s_mov_b64 exec, -1")
    a("L_fin:")
    if delay:
        a("s_mov_b32 s8, %d" % delay)
        a("L_delay:")
        for _ in range(8): a("v_add_f32 v1, v1, v1")
        a("s_sub_u32 s8, s8, 1")
        a("s_cmp_lg_u32 s8, 0")
        a("s_cbranch_scc1 L_delay")
    if stamps:
        g.stamp("end")
    body_stamp = ""
    if stamps:
        pass
    a("L_end:") if not stamps else None
    if stamps:
        a("L_end:")
        a("s_cmp_ge_u32 s2, 256")
        a("s_cbranch_scc1 L_end2")
        a("s_waitcnt lgkmcnt(0) vmcnt(0)")
        a("s_lshl_b32 s8, s2, 3"); a("s_add_u32 s8, s8, s5"); a("s_lshl_b32 s8, s8, 8"); a("s_add_u32 s8, s8, %d" % WS_ST)
        a("v_mov_b32 v1, s8")
        a("s_mov_b64 exec, 1")
        for k in range(21):
            a("v_mov_b32 v4, s%d" % (58 + 2 * k)); a("v_mov_b32 v5, s%d" % (59 + 2 * k))
            a("global_store_dwordx2 v1, v[4:5], %s offset:%d" % (P(pWS), 8 * k))
        a("L_end2:")
    text = a.text()
    probs = hazard.check(text, verbose=True)
    return wrap(text, 256, 512, LDS_BYTES, 152, 100), g.stnames

if __name__ == "__main__":
    t, names = gen(stamps=False)
    open("v2.s", "w").write(t)
    t, names = gen(stamps=True)
    open("v2_st.s", "w").write(t)
    open("v2_st.names", "w").write(" ".join(names))
    print(names)
    open("v2_delay.s", "w").write(gen(delay=250)[0])
    open("v2_nopf.s", "w").write(gen(prefetch_code=False)[0])
    open("v2_nont.s", "w").write(gen(nt=False)[0])
```

```python
import sys, struct
from asmgen import *
import hazard

LOG2E = 1.4426950408889634
def f2u(f):
    return struct.unpack("<I", struct.pack("<f", f))[0]

WS_P = 0x20000
WS_QB = 0x40000
WS_GRP = 0x100000
O_QA, O_G, O_O, O_M = 0, 0x4000, 0xC000, 0x1C000
WS_ST = 0x200000
L_WQ = 0
L_GT = 16384
L_UP = 24576
L_V = 32768
L_K = 65536
L_WO = 98304
L_DN = 114688
L_XN = 122880
L_XR = 123904
L_QB = 124928
L_PB = 125952
L_MM = 126976
L_LL = 127104
L_OH = 127232
L_LOC = 127488
L_QS = 127552
LDS_BYTES = 128064

S_A = {"mid": ["k0", "k1"], "Bx": ["k2", "k3"], "pqwait": "k1", "kw": ["pq0", "pq1", "v0", "v1"],
       "pq": ["v2", "v3"], "Bq": ["gt", "up"], "Bm": ["wo0"], "Bp": ["wo1", "dn"], "gpub": ["po", "pm", "pg"]}

class G:
    def __init__(self, stamps, nt, spin):
        self.a = Asm()
        self.stamps = stamps or []
        self.nst = 0
        self.stnames = []
        self.q = []
        self.nt = " nt" if nt else ""
        self.spin = spin
    def cnt(self, name, sreg):
        if name not in self.stamps: return
        k = self.nst; self.nst += 1
        self.stnames.append(name)
        self.a("s_mov_b32 s%d, s%d" % (58 + 2 * k, sreg))
        self.a("s_mov_b32 s%d, 0" % (59 + 2 * k))
    def stamp(self, name):
        if name not in self.stamps: return
        k = self.nst; self.nst += 1
        assert k < 21
        self.stnames.append(name)
        self.a("s_memrealtime s[%d:%d]" % (58 + 2 * k, 59 + 2 * k))
    def issue(self, name, text):
        self.a(text); self.q.append(name)
    def wait(self, *names, lgkm=False):
        idx = [self.q.index(n) for n in names if n in self.q]
        if not idx:
            if lgkm: self.a("s_waitcnt lgkmcnt(0)")
            return
        i = max(idx)
        n = len(self.q) - 1 - i
        self.a("s_waitcnt vmcnt(%d)%s" % (n, " lgkmcnt(0)" if lgkm else ""))
        self.q = self.q[i + 1:]

def gen(stamps=None, nt=True, prefetch_code=True, sched=None, spin=100000, hold=0, tlb=False, pretouch=True, gu_early=False, dsmax=True, pipefin=True, ptp=False, pfsleep=0, vlast=False, klate=False, pfl="sc1", pst="sc1", pfdelay=0, posleep=0, podelay=0, pqsleep=0, gu_mid=False, streamonly=None, noqb=False, lazyqb=False, perm=False):
    g = G(stamps, nt, spin)
    a = g.a
    NT = g.nt
    sched = sched or S_A
    pX, pK, pV, pWQ, pWO, pGT, pUP, pDN, pOUT, pDBG, pWS = 16, 18, 20, 22, 24, 28, 30, 32, 34, 36, 38
    sE, sT4, sSELA, sSELB, sSELT, sMASK = 40, 41, 42, 43, 44, 45
    sHI = 10
    sCNT, sRBW, sCB4 = 52, 53, 54
    sXCC, sLOC = 7, 26
    sMK, sMV, sMWO, sMDN, sMGT, sMUP = 12, 13, 57, 6, 48, 49
    sP1, sP2 = 50, 51
    sGRP = 47
    sDQ = 46
    sS1, sS2 = 14, 15
    def P(p): return "s[%d:%d]" % (p, p + 1)
    def V(r, n=1): return "v%d" % r if n == 1 else "v[%d:%d]" % (r, r + n - 1)
    vL, vX16, vRHO, vC16, vS = 2, 3, 4, 5, 6
    vWQ0, vWQ1, vGU = 7, 8, 9
    vK = [10, 11, 12, 13]
    vV0, vV1, vWO0, vWO1, vDN = 14, 15, 16, 17, 18
    vTAG, vTAG3, vE = 19, 20, 21
    vTR, vTRO, vXQ, vXG, vHD, vOH = 22, 23, 24, 25, 26, 27
    vKA = [28, 29, 30, 31]
    vPQ, vPG, vPO, vPM = 32, 33, 34, 35
    vQP, vGP, vOP, vPP = 36, 37, 38, 39
    vHS, vHR, vPW = 40, 41, 42
    t0, t1, t2, t3 = 43, 44, 45, 1
    vPF = 46
    vMX = 121
    vMP = 122
    vQW, vPERM = 123, 132
    X, PQ0, PQ1, PG, PO, PM = 48, 52, 56, 60, 64, 68
    W = 72
    a("s_cmp_ge_u32 s2, 256")
    a("s_cbranch_scc1 L_end")
    g.stamp("entry")
    if hold: a("s_memrealtime s[98:99]")
    a("s_load_dwordx16 s[16:31], s[0:1], 0")
    a("s_load_dwordx8 s[32:39], s[0:1], 64")
    a("v_lshrrev_b32 v1, 6, v0")
    a("v_and_b32 v%d, 63, v0" % vL)
    a("s_lshr_b32 s3, s2, 5" if perm else "s_and_b32 s3, s2, 7")
    a("v_readfirstlane_b32 s5, v1")
    a("s_and_b32 s4, s2, 31" if perm else "s_lshr_b32 s4, s2, 3")
    a("v_lshrrev_b32 v%d, 4, v%d" % (vRHO, vL))
    a("v_and_b32 v%d, 15, v%d" % (vC16, vL))
    a("v_lshlrev_b32 v%d, 4, v%d" % (vX16, vL))
    a("v_lshlrev_b32 v%d, 1, v%d" % (t0, vRHO))
    a("v_xor_b32 v%d, v%d, v%d" % (t0, t0, vC16))
    a("v_lshlrev_b32 v%d, 4, v%d" % (vS, t0))
    a("s_and_b32 s%d, s5, 1" % sP1); a("s_lshl_b32 s%d, s%d, 7" % (sP1, sP1))
    a("s_lshr_b32 s10, s4, 2")
    a("s_and_b32 s%d, s4, 3" % sCB4)
    a("s_lshl_b32 s8, s10, 19")
    a("s_lshl_b32 s9, s5, 16")
    a("s_add_u32 s8, s8, s9")
    a("s_lshl_b32 s9, s3, 10")
    a("s_add_u32 s8, s8, s9")
    a("s_lshl_b32 s9, s%d, 8" % sCB4)
    a("s_add_u32 s8, s8, s9")
    a("v_xor_b32 v%d, s%d, v%d" % (t0, sP1, vS))
    a("v_lshl_add_u32 v%d, v%d, 13, v%d" % (vWQ0, vRHO, t0))
    a("v_add_u32 v%d, s8, v%d" % (vWQ0, vWQ0))
    a("v_add_u32 v%d, %d, v%d" % (vWQ1, 4 * 8192 - 1024, vWQ0))
    a("s_lshl_b32 s11, s5, 11")
    a("s_mov_b32 m0, s11")
    a("v_mov_b32 v%d, 0" % t3)
    a("s_lshl_b32 s8, s3, 24")
    a("s_lshl_b32 s9, s4, 15")
    a("s_add_u32 s8, s8, s9")
    a("s_lshl_b32 s9, s5, 12")
    a("s_add_u32 s8, s8, s9")
    a("s_add_u32 s8, s8, %d" % (61440 * 256))
    a("v_xor_b32 v%d, v%d, v%d" % (t1, vRHO, vC16))
    a("v_lshlrev_b32 v%d, 4, v%d" % (t1, t1))
    a("v_lshl_add_u32 v%d, v%d, 8, v%d" % (t2, vRHO, t1))
    a("v_add_u32 v%d, s8, v%d" % (vK[0], t2))
    for i in range(1, 4):
        a("v_xor_b32 v%d, %d, v%d" % (vK[i], i << 6, vK[0]))
    a("s_add_u32 s%d, s9, %d" % (sMK, L_K))
    a("s_add_u32 s%d, s9, %d" % (sMV, L_V))
    a("s_waitcnt lgkmcnt(0)")
    g.stamp("karg")
    def dma(name, voff, ptr, imm):
        g.issue(name, "global_load_lds_dwordx4 v%d, %s offset:%d%s" % (voff, P(ptr), imm, NT))
    g.issue("x", "global_load_dwordx4 %s, v%d, %s" % (V(X, 4), vX16, P(pX)))
    g.issue("e", "global_load_dword v%d, v%d, %s sc1" % (vE, t3, P(pWS)))
    dma("wq0", vWQ0, pWQ, 0)
    dma("wq1", vWQ1, pWQ, 1024)
    pollld = {}
    def ld(dst, addr, off=0):
        return "global_load_dwordx4 %s, v%d, %s%s sc1" % (V(dst, 4), addr, P(pWS), (" offset:%d" % off) if off else "")
    pollld["pq0"] = pollld["tq0"] = ld(PQ0, vPQ)
    pollld["pq1"] = pollld["tq1"] = ld(PQ1, vPQ, 1024)
    pollld["pg"] = pollld["tg"] = ld(PG, vPG)
    pollld["po"] = pollld["to"] = ld(PO, vPO)
    pollld["pm"] = pollld["tm"] = ld(PM, vPM)
    cur_m0 = [None]
    def stream(name):
        if name[0] == "k": i = int(name[1]); return (sMK, vK[i], pK, i * 1024)
        if name[0] == "v": i = int(name[1]); return (sMV, vV0 if i < 2 else vV1, pV, i * 1024)
        return {"wo0": (sMWO, vWO0, pWO, 0), "wo1": (sMWO, vWO1, pWO, 1024), "dn": (sMDN, vDN, pDN, 0),
                "gt": (sMGT, vGU, pGT, 0), "up": (sMUP, vGU, pUP, 0)}[name]
    def loads_at(pt):
        for name in sched.get(pt, []):
            if name == "PT":
                do_pretouch(); continue
            if name in pollld:
                g.issue(name, pollld[name]); continue
            m, voff, ptr, imm = stream(name)
            if cur_m0[0] != m:
                a("s_mov_b32 m0, s%d" % m); a("s_nop 0"); cur_m0[0] = m
            dma(name, voff, ptr, imm)
    loads_at("start")
    g.stamp("issue0")
    if prefetch_code:
        a("s_cmp_lt_u32 s2, 16")
        a("s_cbranch_scc0 L_nopf")
        a("s_cmp_eq_u32 s5, 7")
        a("s_cbranch_scc0 L_nopf")
        a("s_getpc_b64 s[8:9]")
        a("L_pc:")
        a("v_lshlrev_b32 v1, 7, v%d" % vL)
        a("v_min_u32 v1, L_end-L_pc, v1")
        a("global_load_dword v%d, v1, s[8:9]" % vPF)
        a("L_nopf:")
    a("s_lshl_b32 s8, s3, 24")
    a("s_lshl_b32 s9, s4, 15")
    a("s_add_u32 s8, s8, s9")
    a("s_lshl_b32 s9, s5, 12")
    a("s_add_u32 s8, s8, s9")
    a("s_add_u32 s8, s8, %d" % (61440 * 256))
    a("v_lshl_add_u32 v%d, v%d, 8, v%d" % (t1, vRHO, vS))
    a("v_add_u32 v%d, s8, v%d" % (vV0, t1))
    a("v_xor_b32 v%d, 128, v%d" % (vV1, vV0))
    a("s_lshl_b32 s%d, s3, 17" % sGRP); a("s_add_u32 s%d, s%d, %d" % (sGRP, sGRP, WS_GRP))
    def do_pretouch():
        lb = a.label("L_nopt")
        a("s_cmp_lg_u32 s5, 6")
        a("s_cbranch_scc1 %s" % lb)
        a("s_lshl_b32 s9, s4, 12"); a("s_add_u32 s9, s9, s%d" % sGRP)
        a("v_and_b32 v%d, 31, v%d" % (t3, vL))
        a("v_lshlrev_b32 v%d, 7, v%d" % (t3, t3))
        a("v_add_u32 v%d, s9, v%d" % (t3, t3))
        a("global_load_dword v47, v%d, %s sc1" % (t3, P(pWS)))
        a("%s:" % lb)
    if pretouch is True:
        do_pretouch()
    if ptp:
        a("s_cmp_lg_u32 s5, 5")
        a("s_cbranch_scc1 L_noptp")
        a("s_cmp_ge_u32 s2, 128")
        a("s_cbranch_scc1 L_noptp")
        a("s_lshl_b32 s9, s2, 10"); a("s_add_u32 s9, s9, %d" % WS_P)
        a("v_lshlrev_b32 v%d, 7, v%d" % (t1, vL))
        a("v_and_b32 v%d, 0x380, v%d" % (t1, t1))
        a("v_add_u32 v%d, s9, v%d" % (t1, t1))
        a("global_load_dword v47, v%d, %s sc1" % (t1, P(pWS)))
        a("L_noptp:")
    a("s_lshl_b32 s%d, s3, 3" % sRBW)
    a("s_add_u32 s%d, s%d, s10" % (sRBW, sRBW))
    a("v_lshl_add_u32 v%d, v%d, 10, v%d" % (vWO0, vRHO, t0))
    a("s_lshl_b32 s8, s%d, 16" % sRBW)
    a("s_lshl_b32 s9, s5, 13")
    a("s_add_u32 s8, s8, s9")
    a("s_lshl_b32 s11, s%d, 8" % sCB4)
    a("s_add_u32 s8, s8, s11")
    a("v_add_u32 v%d, s8, v%d" % (vWO0, vWO0))
    a("v_add_u32 v%d, 3072, v%d" % (vWO1, vWO0))
    a("s_bfe_u32 s%d, s5, 0x10001" % sP2); a("s_lshl_b32 s%d, s%d, 7" % (sP2, sP2))
    a("v_xor_b32 v%d, s%d, v%d" % (t0, sP2, vS))
    a("v_lshl_add_u32 v%d, v%d, 10, v%d" % (vDN, vRHO, t0))
    a("s_lshl_b32 s8, s%d, 15" % sRBW)
    a("s_lshl_b32 s9, s5, 12")
    a("s_add_u32 s8, s8, s9")
    a("s_add_u32 s8, s8, s11")
    a("v_add_u32 v%d, s8, v%d" % (vDN, vDN))
    a("v_mul_u32_u24 v%d, 3584, v%d" % (vGU, vRHO))
    a("v_add_u32 v%d, v%d, v%d" % (vGU, vGU, t0))
    a("s_and_b32 s11, s4, 15")
    a("s_mul_i32 s8, s11, 114688")
    a("s_mul_i32 s9, s5, 14336")
    a("s_add_u32 s8, s8, s9")
    a("s_lshl_b32 s9, s3, 1"); a("s_lshr_b32 s27, s4, 4"); a("s_add_u32 s27, s27, s9")
    a("s_lshl_b32 s9, s27, 8")
    a("s_add_u32 s8, s8, s9")
    a("v_add_u32 v%d, s8, v%d" % (vGU, vGU))
    a("s_cmp_lg_u32 s3, 7")
    a("s_cbranch_scc1 L_hasB")
    a("s_mov_b64 %s, %s" % (P(pGT), P(pX)))
    a("s_mov_b64 %s, %s" % (P(pUP), P(pX)))
    a("s_mov_b64 %s, %s" % (P(pDN), P(pX)))
    a("v_mov_b32 v%d, v%d" % (vGU, vX16))
    a("v_mov_b32 v%d, v%d" % (vDN, vX16))
    a("L_hasB:")
    a("s_lshl_b32 s8, s5, 11"); a("s_add_u32 s%d, s8, %d" % (sMWO, L_WO))
    a("s_lshl_b32 s8, s5, 10"); a("s_add_u32 s%d, s8, %d" % (sMDN, L_DN))
    a("s_add_u32 s%d, s8, %d" % (sMGT, L_GT)); a("s_add_u32 s%d, s8, %d" % (sMUP, L_UP))
    loads_at("mid")
    if tlb:
        a("global_load_dword v47, v%d, %s" % (vV0, P(pV)))
        a("global_load_dword v47, v%d, %s" % (vWO0, P(pWO)))
        a("global_load_dword v47, v%d, %s" % (vDN, P(pDN)))
        a("global_load_dword v47, v%d, %s" % (vGU, P(pGT)))
        a("global_load_dword v47, v%d, %s" % (vGU, P(pUP)))
    a("s_lshl_b32 s9, s5, 11"); a("s_add_u32 s8, s9, s%d" % sGRP)
    a("v_add_u32 v%d, s8, v%d" % (vPQ, vX16))
    a("v_and_b32 v%d, 0x1f0, v%d" % (t1, vX16))
    a("s_and_b32 s9, s10, 3"); a("s_lshl_b32 s9, s9, 3"); a("s_add_u32 s9, s9, s5"); a("s_lshl_b32 s9, s9, 9")
    a("s_lshr_b32 s8, s4, 4"); a("s_lshl_b32 s27, s8, 14"); a("s_add_u32 s27, s27, s%d" % sGRP); a("s_add_u32 s27, s27, %d" % O_G)
    a("s_add_u32 s8, s27, s9")
    a("v_add_u32 v%d, s8, v%d" % (vPG, t1))
    a("s_lshr_b32 s8, s4, 3")
    a("s_lshl_b32 s9, s8, 9"); a("s_add_u32 s9, s9, s%d" % sGRP); a("s_add_u32 s9, s9, %d" % O_M)
    a("v_add_u32 v%d, s9, v%d" % (vPM, t1))
    a("v_lshlrev_b32 v%d, 1, v%d" % (t1, t1))
    a("v_lshrrev_b32 v%d, 5, v%d" % (t2, vL))
    a("v_lshl_add_u32 v%d, v%d, 4, v%d" % (t1, t2, t1))
    a("s_lshl_b32 s8, s8, 14")
    a("s_and_b32 s9, s10, 1"); a("s_lshl_b32 s9, s9, 3"); a("s_add_u32 s9, s9, s5"); a("s_lshl_b32 s9, s9, 10")
    a("s_add_u32 s8, s8, s9"); a("s_add_u32 s8, s8, s%d" % sGRP); a("s_add_u32 s8, s8, %d" % O_O)
    a("v_add_u32 v%d, s8, v%d" % (vPO, t1))
    loads_at("addr")
    a("s_mov_b32 s%d, 0x0c0c0400" % sSELA)
    a("s_mov_b32 s%d, 0x04000c0c" % sSELB)
    a("s_mov_b32 s%d, 0x07060500" % sSELT)
    a("s_mov_b32 s%d, 0xffffff00" % sMASK)
    a("s_mov_b32 s%d, 0" % sCNT)
    a("s_getreg_b32 s%d, hwreg(HW_REG_XCC_ID, 0, 3)" % sXCC)
    a("v_mov_b32 v%d, 0" % t1)
    a("v_mov_b32 v%d, %d" % (t2, L_LOC))
    a("ds_write_b32 v%d, v%d" % (t2, t1))
    if dsmax:
        a("v_mov_b32 v%d, 0xff800000" % t1)
        a("v_and_b32 v%d, 12, v%d" % (t2, vX16) if False else "v_lshlrev_b32 v%d, 2, v%d" % (t2, vC16))
        a("v_add_u32 v%d, %d, v%d" % (t2, L_MM, t2))
        a("ds_write_b32 v%d, v%d" % (t2, t1))
    a("v_bfe_u32 v%d, v%d, 2, 2" % (t0, vL))
    a("v_and_b32 v%d, 1, v%d" % (t1, vRHO))
    a("v_lshl_or_b32 v%d, v%d, 2, v%d" % (t1, t1, t0))
    a("v_lshlrev_b32 v%d, 1, v%d" % (t1, t1))
    a("v_bfe_u32 v%d, v%d, 1, 1" % (t2, vL))
    a("s_lshl_b32 s8, s5, 1")
    a("v_add_u32 v%d, s8, v%d" % (t2, t2))
    a("v_xor_b32 v%d, v%d, v%d" % (t1, t1, t2))
    a("v_and_b32 v%d, 1, v%d" % (t2, vL))
    a("v_lshlrev_b32 v%d, 3, v%d" % (t2, t2))
    a("v_lshl_add_u32 v%d, v%d, 4, v%d" % (t1, t1, t2))
    a("v_lshl_add_u32 v%d, v%d, 3, v%d" % (t0, vRHO, t0))
    a("v_lshl_add_u32 v%d, v%d, 8, v%d" % (vTR, t0, t1))
    a("v_add_u32 v%d, %d, v%d" % (vTRO, L_WO, vTR))
    a("v_lshlrev_b32 v%d, 4, v%d" % (t0, vRHO))
    a("s_lshl_b32 s8, s10, 7"); a("s_add_u32 s8, s8, %d" % L_XN)
    a("v_add_u32 v%d, s8, v%d" % (vXQ, t0))
    a("s_lshl_b32 s8, s11, 6"); a("s_add_u32 s8, s8, %d" % L_XN)
    a("v_add_u32 v%d, s8, v%d" % (vXG, t0))
    a("v_add_u32 v%d, %d, v%d" % (vOH, L_OH, t0))
    a("v_and_b32 v%d, 3, v%d" % (t1, vL))
    a("v_lshl_add_u32 v%d, v%d, 6, v%d" % (vHD, t1, t0))
    a("v_add_u32 v%d, %d, v%d" % (vHD, L_QB, vHD))
    a("v_lshlrev_b32 v%d, 5, v%d" % (vHR, t1))
    a("v_add_u32 v%d, %d, v%d" % (vHR, L_MM, vHR))
    a("s_lshl_b32 s8, s5, 2")
    a("v_add_u32 v%d, s8, v%d" % (vHS, vHR))
    if dsmax:
        a("v_lshlrev_b32 v%d, 2, v%d" % (vMX, t1))
        a("v_add_u32 v%d, %d, v%d" % (vMX, L_MM, vMX))
    a("s_lshl_b32 s8, s%d, 12" % sCB4)
    a("s_lshr_b32 s9, s5, 2"); a("s_lshl_b32 s9, s9, 11"); a("s_add_u32 s8, s8, s9")
    a("s_lshl_b32 s9, s10, 8"); a("s_add_u32 s8, s8, s9")
    a("s_and_b32 s9, s5, 3"); a("s_lshl_b32 s9, s9, 6"); a("s_add_u32 s8, s8, s9")
    a("s_add_u32 s8, s8, s%d" % sGRP)
    a("v_add_u32 v%d, s8, v%d" % (vQP, t0))
    a("s_lshl_b32 s9, s5, 11"); a("s_add_u32 s8, s27, s9")
    a("s_lshl_b32 s9, s11, 4"); a("s_add_u32 s8, s8, s9")
    a("v_lshlrev_b32 v%d, 9, v%d" % (t1, vRHO))
    a("v_add_u32 v%d, s8, v%d" % (vGP, t1))
    a("s_lshl_b32 s8, s%d, 15" % sCB4); a("s_lshl_b32 s9, s5, 12"); a("s_add_u32 s8, s8, s9")
    a("s_lshl_b32 s9, s%d, 4" % sRBW); a("s_add_u32 s8, s8, s9"); a("s_add_u32 s8, s8, %d" % WS_P)
    a("v_lshlrev_b32 v%d, 10, v%d" % (t1, vRHO))
    a("v_add_u32 v%d, s8, v%d" % (vPP, t1))
    a("v_lshlrev_b32 v%d, 14, v%d" % (t1, vC16))
    a("v_lshrrev_b32 v%d, 1, v%d" % (t2, vRHO))
    a("v_lshl_add_u32 v%d, v%d, 10, v%d" % (t1, t2, t1))
    a("v_and_b32 v%d, 1, v%d" % (t2, vRHO))
    a("v_lshl_add_u32 v%d, v%d, 4, v%d" % (t1, t2, t1))
    a("s_lshl_b32 s9, s4, 5"); a("s_add_u32 s8, s9, s%d" % sGRP)
    a("s_lshl_b32 s9, s5, 11"); a("s_add_u32 s8, s8, s9"); a("s_add_u32 s8, s8, %d" % O_O)
    a("v_add_u32 v%d, s8, v%d" % (vOP, t1))
    a("v_and_b32 v%d, 3, v%d" % (t1, vL))
    a("v_lshlrev_b32 v%d, 9, v%d" % (t1, t1))
    a("s_lshl_b32 s9, s4, 4"); a("s_add_u32 s8, s9, s%d" % sGRP); a("s_add_u32 s8, s8, %d" % O_M)
    a("v_add_u32 v%d, s8, v%d" % (vMP, t1))
    a("v_lshlrev_b32 v%d, 6, v%d" % (t1, vC16))
    a("v_lshl_add_u32 v%d, v%d, 3, v%d" % (t1, vRHO, t1))
    a("s_lshr_b32 s9, s5, 1"); a("s_lshl_b32 s9, s9, 8"); a("s_and_b32 s8, s5, 1"); a("s_lshl_b32 s8, s8, 5"); a("s_add_u32 s9, s9, s8"); a("s_add_u32 s9, s9, %d" % L_PB)
    a("v_add_u32 v%d, s9, v%d" % (vPW, t1))
    a("v_and_b32 v%d, 1, v%d" % (t1, vRHO))
    a("v_lshrrev_b32 v%d, 1, v%d" % (t2, vRHO))
    a("v_lshl_add_u32 v%d, v%d, 1, v%d" % (t1, t1, t2))
    a("v_mov_b32 v%d, v%d" % (vPERM, t1))
    a("v_and_b32 v%d, 7, v%d" % (t2, vC16))
    a("v_lshl_add_u32 v%d, v%d, 2, v%d" % (t1, t2, t1))
    a("v_lshlrev_b32 v%d, 1, v%d" % (t1, t1))
    a("v_lshrrev_b32 v%d, 3, v%d" % (t2, vC16))
    a("v_lshl_add_u32 v%d, v%d, 8, v%d" % (t1, t2, t1))
    a("s_and_b32 s8, s5, 1"); a("s_lshl_b32 s8, s8, 9"); a("s_lshr_b32 s9, s5, 1"); a("s_lshl_b32 s9, s9, 6"); a("s_add_u32 s8, s8, s9"); a("s_add_u32 s8, s8, %d" % L_QB)
    a("v_add_u32 v%d, s8, v%d" % (vQW, t1))
    a("v_xor_b32 v%d, v%d, v%d" % (t1, vRHO, vC16))
    a("v_lshlrev_b32 v%d, 4, v%d" % (t1, t1))
    a("v_lshl_add_u32 v%d, v%d, 8, v%d" % (t1, vC16, t1))
    a("v_add_u32 v%d, s%d, v%d" % (vKA[0], sMK, t1))
    for ks in range(1, 4):
        a("v_xor_b32 v%d, %d, v%d" % (vKA[ks], ks << 6, vKA[0]))
    g.stamp("addr")
    if streamonly:
        order, win = streamonly
        issued = ["wq0", "wq1"] + [n for pt in ("start", "mid", "addr") for n in sched.get(pt, [])]
        todo = [n for n in order if n not in issued]
        def iss(name):
            m, voff, ptr, imm = stream(name)
            if cur_m0[0] != m:
                a("s_mov_b32 m0, s%d" % m); a("s_nop 0"); cur_m0[0] = m
            dma(name, voff, ptr, imm)
        allslots = list(order)
        k = 0
        inflight = list(issued)
        while len(inflight) < win and todo:
            n = todo.pop(0); iss(n); inflight.append(n)
        idx = 0
        while inflight:
            n = inflight.pop(0)
            g.wait(n)
            g.stamp("L_" + n)
            if todo:
                m = todo.pop(0); iss(m); inflight.append(m)
        a("s_branch L_end")
    def unpack(dst, src, n):
        for k in range(n):
            a("v_lshlrev_b32 v%d, 16, v%d" % (dst + 2 * k, src + k))
            a("v_and_b32 v%d, 0xffff0000, v%d" % (dst + 2 * k + 1, src + k))
    a("s_cmp_ge_u32 s5, 4")
    a("s_cbranch_scc1 L_noln")
    svq0 = list(g.q)
    g.wait("x")
    g.stamp("x")
    XF = W; S1 = W + 8; S2 = W + 9; A_ = W + 10; B_ = W + 11; D4 = W + 12
    a("s_mov_b32 s8, 0x3f803f80")
    a("v_dot2_f32_bf16 v%d, v%d, s8, 0" % (S1, X))
    a("v_dot2_f32_bf16 v%d, v%d, v%d, 0" % (S2, X, X))
    for k in range(1, 4):
        a("v_dot2_f32_bf16 v%d, v%d, s8, v%d" % (S1, X + k, S1))
        a("v_dot2_f32_bf16 v%d, v%d, v%d, v%d" % (S2, X + k, X + k, S2))
    a("v_add_u32 v%d, %d, v%d" % (t0, L_XR, vX16))
    a("ds_write_b128 v%d, %s" % (t0, V(X, 4)))
    unp = []
    for k in range(4):
        unp.append("v_lshlrev_b32 v%d, 16, v%d" % (XF + 2 * k, X + k))
        unp.append("v_and_b32 v%d, 0xffff0000, v%d" % (XF + 2 * k + 1, X + k))
    mods = ("row_shr:1 row_mask:0xf bank_mask:0xf bound_ctrl:0", "row_shr:2 row_mask:0xf bank_mask:0xf bound_ctrl:0",
            "row_shr:4 row_mask:0xf bank_mask:0xf bound_ctrl:0", "row_shr:8 row_mask:0xf bank_mask:0xf bound_ctrl:0",
            "row_bcast:15 row_mask:0xa bank_mask:0xf", "row_bcast:31 row_mask:0xc bank_mask:0xf")
    a(unp.pop(0))
    for mi, mod in enumerate(mods):
        a("v_add_f32_dpp v%d, v%d, v%d %s" % (S1, S1, S1, mod))
        a("v_add_f32_dpp v%d, v%d, v%d %s" % (S2, S2, S2, mod))
        a(unp.pop(0) if unp else "s_nop 0")
    while unp: a(unp.pop(0))
    a("v_readlane_b32 s%d, v%d, 63" % (sS1, S1))
    a("v_readlane_b32 s%d, v%d, 63" % (sS2, S2))
    a("v_mov_b32 v%d, 0x%x" % (A_, f2u(1.0 / 512)))
    a("v_add_u32 v%d, %d, v%d" % (t0, L_XN, vX16))
    a("v_mul_f32 v%d, s%d, v%d" % (B_, sS2, A_))
    a("v_mul_f32 v%d, s%d, v%d" % (A_, sS1, A_))
    a("v_fma_f32 v%d, -v%d, v%d, v%d" % (B_, A_, A_, B_))
    a("v_max_f32 v%d, 0, v%d" % (B_, B_))
    a("v_cvt_pk_bf16_f32 v%d, v%d, v%d" % (A_, A_, B_))
    a("v_and_b32 v%d, 0xffff0000, v%d" % (B_, A_))
    a("v_lshlrev_b32 v%d, 16, v%d" % (A_, A_))
    a("v_add_f32 v%d, 0x%x, v%d" % (B_, f2u(1e-5), B_))
    a("v_cvt_pk_bf16_f32 v%d, v%d, v%d" % (B_, B_, B_))
    a("v_and_b32 v%d, 0xffff0000, v%d" % (B_, B_))
    a("v_sqrt_f32 v%d, v%d" % (B_, B_))
    for k in range(8):
        a("v_sub_f32 v%d, v%d, v%d" % (XF + k, XF + k, A_))
    a("v_cvt_pk_bf16_f32 v%d, v%d, v%d" % (B_, B_, B_))
    a("v_and_b32 v%d, 0xffff0000, v%d" % (B_, B_))
    a("v_rcp_f32 v%d, v%d" % (B_, B_))
    for k in range(4):
        a("v_cvt_pk_bf16_f32 v%d, v%d, v%d" % (D4 + k, XF + 2 * k, XF + 2 * k + 1))
    unpack(XF, D4, 4)
    for k in range(8):
        a("v_mul_f32 v%d, v%d, v%d" % (XF + k, XF + k, B_))
    for k in range(4):
        a("v_cvt_pk_bf16_f32 v%d, v%d, v%d" % (D4 + k, XF + 2 * k, XF + 2 * k + 1))
    a("ds_write_b128 v%d, %s" % (t0, V(D4, 4)))
    a("L_noln:")
    g.q = svq0
    g.stamp("ln")
    def tagit(d, loc=False):
        for k in range(4):
            a("v_perm_b32 v%d, v%d, v%d, s%d" % (d + k, d + k, vTAG3 if (loc and k == 3) else vTAG, sSELT))
    def exec32(x):
        a("s_mov_b32 exec_lo, 0x%08x" % x); a("s_mov_b32 exec_hi, 0x%08x" % x)
    def pubstores(items):
        lb = a.label("L_st")
        def txt(it): return "global_store_dwordx4 v%d, %s, %s%s" % (it[1], V(it[3], 4), P(pWS), (" offset:%d" % it[2]) if it[2] else "")
        a("s_cmp_eq_u32 s%d, 0" % sLOC)
        a("s_cbranch_scc1 %s_l" % lb)
        for it in items: a(txt(it) + " sc1")
        a("s_branch %s_d" % lb)
        a("%s_l:" % lb)
        for it in items: a(txt(it))
        a("%s_d:" % lb)
        for it in items:
            if it[0]: g.q.append(it[0])
    def mfma(d, A, B, first):
        a("v_mfma_f32_16x16x32_bf16 %s, %s, %s, %s" % (V(d, 4), V(A, 4), V(B, 4), "0" if first else V(d, 4)))
    def trd(dst, addr, off):
        a("ds_read_b64_tr_b16 %s, v%d offset:%d" % (V(dst, 2), addr, off))
        a("ds_read_b64_tr_b16 %s, v%d offset:%d" % (V(dst + 2, 2), addr, off + 1024))
    g.wait("wq1", "e", lgkm=True)
    g.stamp("prewq")
    loads_at("preBx")
    a("v_readfirstlane_b32 s%d, v%d" % (sE, vE))
    a("s_barrier")
    g.stamp("wq")
    AW = W; BX = W + 8; DQ = W + 16
    for ks in range(2):
        trd(AW + 4 * ks, vTR, L_WQ + ks * 8192)
        a("ds_read_b128 %s, v%d offset:%d" % (V(BX + 4 * ks, 4), vXQ, ks * 64))
    loads_at("Bx")
    a("s_add_u32 s%d, s%d, 1" % (sE, sE))
    a("s_and_b32 s8, s%d, 0xff" % sE)
    a("s_mul_i32 s%d, s8, 0x01010101" % sT4)
    a("v_mov_b32 v%d, s8" % vTAG)
    a("s_xor_b32 s8, s8, s%d" % sXCC)
    a("v_mov_b32 v%d, s8" % vTAG3)
    a("s_lshl_b32 s%d, s3, 14" % sDQ); a("s_add_u32 s%d, s%d, %d" % (sDQ, sDQ, WS_QB)); a("s_sub_u32 s%d, s%d, s%d" % (sDQ, sDQ, sGRP))
    if lazyqb:
        a("s_lshl_b32 s8, s5, 6"); a("s_add_u32 s8, s8, %d" % L_QS)
        a("v_lshl_add_u32 v%d, v%d, 4, s8" % (t1, vRHO))
    else:
        a("v_add_u32 v%d, s%d, v%d" % (t0, sDQ, vQP))
    for ks in range(2):
        a("s_waitcnt lgkmcnt(%d)" % (3 - 3 * ks))
        mfma(DQ, AW + 4 * ks, BX + 4 * ks, ks == 0)
    exec32(0x00010001)
    a("s_nop 5")
    tagit(DQ, loc=True)
    g.issue("qsA", "global_store_dwordx4 v%d, %s, %s" % (vQP, V(DQ, 4), P(pWS)))
    if lazyqb:
        a("ds_write_b128 v%d, %s" % (t1, V(DQ, 4)))
    elif not noqb: g.issue("qsB", "global_store_dwordx4 v%d, %s, %s sc1" % (t0, V(DQ, 4), P(pWS)))
    a("s_mov_b64 exec, -1")
    g.stamp("qpub")
    def tagcheck(d, u0, u1):
        a("v_perm_b32 v%d, v%d, v%d, s%d" % (u0, d + 1, d, sSELA))
        a("v_perm_b32 v%d, v%d, v%d, s%d" % (u1, d + 3, d + 2, sSELB))
        a("v_or_b32 v%d, v%d, v%d" % (u0, u0, u1))
    def poll(loads, regs_, last, cname, sleep=0):
        lb = a.label("L_poll")
        g.wait(*last)
        a("%s:" % lb)
        for i, d in enumerate(regs_):
            tagcheck(d, t0, t1)
            if i == 0:
                a("v_cmp_ne_u32 vcc, s%d, v%d" % (sT4, t0))
            else:
                a("v_cmp_ne_u32 s[8:9], s%d, v%d" % (sT4, t0))
                a("s_nop 0")
                a("s_or_b64 vcc, vcc, s[8:9]")
        a("s_cbranch_vccz %s_ok" % lb)
        a("s_add_u32 s%d, s%d, 1" % (sCNT, sCNT))
        a("s_cmp_gt_u32 s%d, %d" % (sCNT, g.spin))
        a("s_cbranch_scc1 %s_ok" % lb)
        if sleep: a("s_sleep %d" % sleep)
        for t in loads: a(t)
        a("s_waitcnt vmcnt(0)")
        a("s_branch %s" % lb)
        a("%s_ok:" % lb)
        g.cnt(cname, sCNT)
    def gu_section():
        g.wait("gt", "up")
        loads_at("preBg")
        a("s_barrier")
        g.stamp("gu")
        AG = W; AU = W + 4; BXG = W + 8
        DG, DU = (124, 128) if vlast else (W + 12, W + 16)
        trd(AG, vTR, L_GT)
        trd(AU, vTR, L_UP)
        a("ds_read_b128 %s, v%d" % (V(BXG, 4), vXG))
        loads_at("Bg")
        a("s_waitcnt lgkmcnt(0)")
        mfma(DG, AG, BXG, True)
        mfma(DU, AU, BXG, True)
        if not vlast:
            gu_publish(DG, DU, 3)
    def gu_publish(DG, DU, nops):
        a("s_cmp_eq_u32 s3, 7")
        a("s_cbranch_scc1 L_nogpub")
        exec32(0x00010001)
        if nops: a("s_nop %d" % nops)
        tagit(DG)
        tagit(DU)
        if gu_early and not vlast:
            a("global_store_dwordx4 v%d, %s, %s sc1" % (vGP, V(DG, 4), P(pWS)))
            a("global_store_dwordx4 v%d, %s, %s offset:256 sc1" % (vGP, V(DU, 4), P(pWS)))
        else:
            pubstores([(None, vGP, 0, DG), (None, vGP, 256, DU)])
        a("s_mov_b64 exec, -1")
        a("L_nogpub:")
        if vlast: a("s_nop 2")
        g.stamp("gpub")
        loads_at("gpub")
    def gu_section_mid():
        g.wait("gt", "up")
        a("s_barrier")
        g.stamp("gu")
        AG = W + 8; AU = W + 12; BXG = W + 16; DG = 124; DU = 128
        trd(AG, vTR, L_GT)
        trd(AU, vTR, L_UP)
        a("ds_read_b128 %s, v%d" % (V(BXG, 4), vXG))
        loads_at("Bg")
        a("s_waitcnt lgkmcnt(0)")
        mfma(DG, AG, BXG, True)
        mfma(DU, AU, BXG, True)
        gu_publish(DG, DU, 3)
    def b_consume(HB0):
        a("s_cmp_eq_u32 s3, 7")
        a("s_cbranch_scc1 L_noB")
        svq = list(g.q)
        poll([pollld["pg"]], [PG], ("pg",), "c_pg")
        g.stamp("pg")
        HA, HB = HB0, HB0 + 1
        a("s_mov_b32 s%d, 0" % sHI); a("s_mov_b32 s%d, -1" % (sHI + 1))
        a("v_cndmask_b32 v%d, v%d, v%d, %s" % (HA, PG, PG + 1, P(sHI)))
        a("v_cndmask_b32 v%d, v%d, v%d, %s" % (HB, PG + 2, PG + 3, P(sHI)))
        a("v_and_b32 v%d, s%d, v%d" % (HA, sMASK, HA))
        a("v_and_b32 v%d, s%d, v%d" % (HB, sMASK, HB))
        for rot in (8, 4, 2, 1):
            a("s_nop 0")
            a("v_add_f32_dpp v%d, v%d, v%d row_ror:%d row_mask:0xf bank_mask:0xf" % (HA, HA, HA, rot))
            a("v_add_f32_dpp v%d, v%d, v%d row_ror:%d row_mask:0xf bank_mask:0xf" % (HB, HB, HB, rot))
        a("s_nop 1")
        a("v_permlane16_swap_b32 v%d, v%d" % (HA, HB))
        a("v_cvt_pk_bf16_f32 v%d, v%d, v%d" % (HA, HA, HB))
        a("v_and_b32 v%d, 0xffff0000, v%d" % (HB, HA))
        a("v_lshlrev_b32 v%d, 16, v%d" % (HA, HA))
        k0 = 0.7978845608028654; k1 = 0.044715
        HC = HB0 + 2
        a("v_mul_f32 v%d, v%d, v%d" % (HC, HA, HA))
        a("v_mul_f32 v%d, 0x%x, v%d" % (HC, f2u(k1), HC))
        a("v_fma_f32 v%d, v%d, v%d, v%d" % (HC, HC, HA, HA))
        a("v_mul_f32 v%d, 0x%x, v%d" % (HC, f2u(-2 * k0 * LOG2E), HC))
        a("v_exp_f32 v%d, v%d" % (HC, HC))
        a("s_nop 0")
        a("v_add_f32 v%d, 1.0, v%d" % (HC, HC))
        a("v_rcp_f32 v%d, v%d" % (HC, HC))
        a("s_nop 0")
        a("v_mul_f32 v%d, v%d, v%d" % (HC, HC, HA))
        a("v_cvt_pk_bf16_f32 v%d, v%d, v%d" % (HC, HC, HC))
        a("v_and_b32 v%d, 0xffff0000, v%d" % (HC, HC))
        a("v_mul_f32 v%d, v%d, v%d" % (HC, HC, HB))
        a("v_cvt_pk_bf16_f32 v%d, v%d, v%d" % (HC, HC, HC))
        a("s_branch L_Bdone")
        a("L_noB:")
        a("v_mov_b32 v%d, 0" % (HB0 + 2))
        a("L_Bdone:")
        g.q = svq
        a("s_lshl_b32 s8, s5, 3"); a("s_add_u32 s8, s8, %d" % (L_OH + 128))
        a("v_lshl_add_u32 v%d, v%d, 1, s8" % (t0, vPERM))
        exec32(0x00010001)
        a("ds_write_b16 v%d, v%d" % (t0, HB0 + 2))
        a("s_mov_b64 exec, -1")
        g.stamp("hdone")
    loads_at("qpub")
    if gu_early or vlast:
        gu_section()
    def qb_publish():
        a("v_and_b32 v%d, 0x1f0, v%d" % (t3, vX16))
        a("v_add_u32 v%d, %d, v%d" % (t3, L_QS, t3))
        a("ds_read_b128 %s, v%d" % (V(PO, 4), t3))
        a("s_lshl_b32 s8, s3, 14"); a("s_lshl_b32 s9, s%d, 12" % sCB4); a("s_add_u32 s8, s8, s9")
        a("s_lshr_b32 s9, s4, 2"); a("s_lshl_b32 s9, s9, 8"); a("s_add_u32 s8, s8, s9"); a("s_add_u32 s8, s8, %d" % WS_QB)
        a("v_bfe_u32 v%d, v%d, 4, 1" % (t3, vL))
        a("v_lshlrev_b32 v%d, 11, v%d" % (t3, t3))
        a("v_lshl_add_u32 v%d, v%d, 4, v%d" % (t3, vC16, t3))
        a("v_add_u32 v%d, s8, v%d" % (t3, t3))
        a("s_waitcnt lgkmcnt(0)")
        a("s_mov_b32 exec_hi, 0")
        a("global_store_dwordx4 v%d, %s, %s sc1" % (t3, V(PO, 4), P(pWS)))
        a("s_mov_b64 exec, -1")
    def issue_list(lst):
        for name in lst:
            if name == "BAR":
                if lazyqb: a("s_waitcnt lgkmcnt(0)")
                a("s_barrier"); continue
            if name == "PT":
                do_pretouch(); continue
            if name in pollld:
                g.issue(name, pollld[name]); continue
            m, voff, ptr, imm = stream(name)
            if cur_m0[0] != m:
                a("s_mov_b32 m0, s%d" % m); a("s_nop 0"); cur_m0[0] = m
            dma(name, voff, ptr, imm)
    for wn, lst in sched["pre"]:
        g.wait(wn)
        if "pq0" in lst: g.stamp("kw")
        issue_list(lst)
    if sched.get("bi", False):
        a("s_barrier")
    issue_list(sched.get("post", []))
    lb = "L_pollq"
    if "k3w" in g.stamps:
        g.wait("k3"); g.stamp("k3w")
    if klate: g.wait("pq0", "pq1")
    else: g.wait("pq0", "pq1", "k3")
    a("%s:" % lb)
    tagcheck(PQ0, t0, t1)
    tagcheck(PQ1, t2, t1)
    a("v_xor_b32 v%d, s%d, v%d" % (t0, sT4, t0))
    a("v_xor_b32 v%d, s%d, v%d" % (t2, sT4, t2))
    a("v_or_b32 v%d, v%d, v%d" % (t1, t0, t2))
    a("v_and_b32 v%d, 0xf8ffffff, v%d" % (t1, t1))
    a("v_cmp_ne_u32 vcc, 0, v%d" % t1)
    a("s_cbranch_vccz %s_ok" % lb)
    a("s_add_u32 s%d, s%d, 1" % (sCNT, sCNT))
    a("s_cmp_gt_u32 s%d, %d" % (sCNT, g.spin))
    a("s_cbranch_scc1 %s_ok" % lb)
    if lazyqb:
        a("s_and_b32 s8, s%d, 7" % sCNT)
        a("s_cmp_lg_u32 s8, 3")
        a("s_cbranch_scc1 L_noqb1")
        qb_publish()
        a("L_noqb1:")
    a("s_and_b32 s8, s%d, 7" % sCNT)
    a("s_cmp_eq_u32 s8, 7")
    a("s_cselect_b32 s8, s%d, 0" % sDQ)
    a("v_add_u32 v%d, s8, v%d" % (t3, vPQ))
    if pqsleep: a("s_sleep %d" % pqsleep)
    a(ld(PQ0, t3)); a(ld(PQ1, t3, 1024))
    a("s_waitcnt vmcnt(0)")
    a("s_branch %s" % lb)
    a("%s_ok:" % lb)
    g.cnt("c_pq", sCNT)
    g.stamp("pq")
    loads_at("pq")
    KR = W; QO = W + 16; SC = W + 32
    if not klate:
        for ks in range(4):
            a("ds_read_b128 %s, v%d" % (V(KR + 4 * ks, 4), vKA[ks]))
    a("s_lshl_b32 s8, s%d, 24" % sXCC)
    a("v_cmp_ne_u32 vcc, s8, v%d" % t0)
    a("v_cmp_ne_u32 s[10:11], s8, v%d" % t2)
    for k in range(4):
        a("v_and_b32 v%d, s%d, v%d" % (PQ0 + k, sMASK, PQ0 + k))
        a("v_and_b32 v%d, s%d, v%d" % (PQ1 + k, sMASK, PQ1 + k))
    a("s_or_b64 vcc, vcc, s[10:11]")
    a("s_cbranch_vccz L_isloc")
    a("v_mov_b32 v%d, %d" % (t1, L_LOC))
    a("v_mov_b32 v%d, 1" % t0)
    a("ds_write_b32 v%d, v%d" % (t1, t0))
    a("L_isloc:")
    for k in range(4):
        a("v_add_f32 v%d, v%d, v%d" % (PQ0 + k, PQ0 + k, PQ1 + k))
    a("s_nop 0")
    a("v_permlane32_swap_b32 v%d, v%d" % (PQ0, PQ0 + 1))
    a("v_permlane32_swap_b32 v%d, v%d" % (PQ0 + 2, PQ0 + 3))
    a("v_add_f32 v%d, v%d, v%d" % (PQ0, PQ0, PQ0 + 1))
    a("v_add_f32 v%d, v%d, v%d" % (PQ0 + 2, PQ0 + 2, PQ0 + 3))
    a("s_nop 1")
    a("v_permlane16_swap_b32 v%d, v%d" % (PQ0, PQ0 + 2))
    a("v_add_f32 v%d, v%d, v%d" % (PQ0, PQ0, PQ0 + 2))
    a("v_cvt_pk_bf16_f32 v%d, v%d, v%d" % (PQ0, PQ0, PQ0))
    a("ds_write_b16 v%d, v%d" % (vQW, PQ0))
    loads_at("preBq")
    a("s_waitcnt lgkmcnt(0)")
    a("s_barrier")
    g.stamp("Bq")
    for ks in range(4):
        a("ds_read_b128 %s, v%d offset:%d" % (V(QO + 4 * ks, 4), vHD, ks * 256))
    a("v_mov_b32 v%d, %d" % (t1, L_LOC))
    a("ds_read_b32 v%d, v%d" % (t2, t1))
    loads_at("Bq")
    if klate:
        for wn, lst in sched.get("preK", []):
            g.wait(wn); issue_list(lst)
        g.wait("k0", "k1", "k2", "k3")
        g.stamp("kland")
        for ks in range(4):
            a("ds_read_b128 %s, v%d" % (V(KR + 4 * ks, 4), vKA[ks]))
    for ks in range(4):
        a("s_waitcnt lgkmcnt(%d)" % ((3 - ks) if klate else (4 - ks)))
        mfma(SC, KR + 4 * ks, QO + 4 * ks, ks == 0)
    a("s_waitcnt lgkmcnt(0)")
    a("v_readfirstlane_b32 s%d, v%d" % (sLOC, t2))
    if lazyqb:
        a("s_nop 0")
        a("s_cmp_eq_u32 s%d, 0" % sLOC)
        a("s_cbranch_scc1 L_noqb2")
        a("s_cmp_lg_u32 s5, 0")
        a("s_cbranch_scc1 L_noqb2")
        qb_publish()
        a("L_noqb2:")
    if vlast:
        a("s_nop 0")
        gu_publish(124, 128, 0)
    else:
        a("s_nop 5")
    TU = W; M_ = W + 4; M2 = W + 5
    SCALE = f2u(128 ** -0.5)
    a("v_cvt_pk_bf16_f32 v%d, v%d, v%d" % (TU, SC, SC + 1))
    a("v_cvt_pk_bf16_f32 v%d, v%d, v%d" % (TU + 1, SC + 2, SC + 3))
    unpack(SC, TU, 2)
    for k in range(4):
        a("v_mul_f32 v%d, 0x%x, v%d" % (SC + k, SCALE, SC + k))
    a("v_cvt_pk_bf16_f32 v%d, v%d, v%d" % (TU, SC, SC + 1))
    a("v_cvt_pk_bf16_f32 v%d, v%d, v%d" % (TU + 1, SC + 2, SC + 3))
    unpack(SC, TU, 2)
    a("v_max3_f32 v%d, v%d, v%d, v%d" % (M_, SC, SC + 1, SC + 2))
    a("v_max_f32 v%d, v%d, v%d" % (M_, M_, SC + 3))
    def xrow(op, m, m2):
        a("v_mov_b32 v%d, v%d" % (m2, m))
        a("s_nop 1")
        a("v_permlane32_swap_b32 v%d, v%d" % (m, m2))
        a("%s v%d, v%d, v%d" % (op, m, m, m2))
        a("v_mov_b32 v%d, v%d" % (m2, m))
        a("s_nop 1")
        a("v_permlane16_swap_b32 v%d, v%d" % (m, m2))
        a("%s v%d, v%d, v%d" % (op, m, m, m2))
    if dsmax:
        exec32(0x000f000f)
        a("ds_max_f32 v%d, v%d" % (vMX, M_))
        a("s_mov_b64 exec, -1")
    else:
        xrow("v_max_f32", M_, M2)
        a("s_mov_b64 exec, 15")
        a("ds_write_b32 v%d, v%d" % (vHS, M_))
        a("s_mov_b64 exec, -1")
    loads_at("preBm")
    a("s_waitcnt lgkmcnt(0)")
    a("s_barrier")
    g.stamp("Bm")
    MR = W + 8
    if dsmax:
        a("ds_read_b32 v%d, v%d" % (M_, vMX))
    else:
        a("ds_read_b128 %s, v%d" % (V(MR, 4), vHR))
        a("ds_read_b128 %s, v%d offset:16" % (V(MR + 4, 4), vHR))
    loads_at("Bm")
    a("s_mov_b32 s8, 0x%x" % f2u(LOG2E))
    a("s_waitcnt lgkmcnt(0)")
    if not dsmax:
        a("v_max3_f32 v%d, v%d, v%d, v%d" % (M_, MR, MR + 1, MR + 2))
        a("v_max3_f32 v%d, v%d, v%d, v%d" % (M_, M_, MR + 3, MR + 4))
        a("v_max3_f32 v%d, v%d, v%d, v%d" % (M_, M_, MR + 5, MR + 6))
        a("v_max_f32 v%d, v%d, v%d" % (M_, M_, MR + 7))
    MG = 120
    a("v_mov_b32 v%d, v%d" % (MG, M_))
    a("v_mul_f32 v%d, 0x%x, v%d" % (M_, f2u(-LOG2E), M_))
    for r in range(4):
        a("v_fma_f32 v%d, v%d, s8, v%d" % (SC + r, SC + r, M_))
    for r in range(4):
        a("v_exp_f32 v%d, v%d" % (SC + r, SC + r))
    a("s_nop 0")
    a("v_cvt_pk_bf16_f32 v%d, v%d, v%d" % (TU, SC, SC + 1))
    a("v_cvt_pk_bf16_f32 v%d, v%d, v%d" % (TU + 1, SC + 2, SC + 3))
    exec32(0x000f000f)
    a("ds_write_b64 v%d, %s" % (vPW, V(TU, 2)))
    a("s_mov_b64 exec, -1")
    a("v_add_f32 v%d, v%d, v%d" % (M_, SC, SC + 1))
    a("v_add_f32 v%d, v%d, v%d" % (M2 + 1, SC + 2, SC + 3))
    loads_at("preBp")
    a("s_waitcnt lgkmcnt(0)")
    a("s_barrier")
    g.stamp("Bp")
    AV = W + 8; BP = W + 24; DO = W + 40
    for ks in range(4):
        a("ds_read_b128 %s, v%d offset:%d" % (V(BP + 4 * ks, 4), vHD, 1024 + ks * 256))
    loads_at("Bp")
    a("v_add_f32 v%d, v%d, v%d" % (M_, M_, M2 + 1))
    xrow("v_add_f32", M_, M2)
    a("s_mov_b64 exec, 15")
    a("ds_write_b32 v%d, v%d offset:%d" % (vHS, M_, L_LL - L_MM))
    a("s_mov_b64 exec, -1")
    if gu_early:
        b_consume(W + 44)
    if gu_mid:
        gu_section_mid()
    for wn, lst in sched.get("preV", []):
        g.wait(wn); issue_list(lst)
    g.wait("v0", "v1", "v2", "v3", lgkm=True)
    loads_at("preBv")
    a("s_barrier")
    g.stamp("v")
    for ks in range(4):
        trd(AV + 4 * ks, vTR, L_V + ks * 8192)
    T8 = W + 44; RS = W + 4
    a("ds_read_b128 %s, v%d offset:%d" % (V(T8, 4), vHR, L_LL - L_MM))
    a("ds_read_b128 %s, v%d offset:%d" % (V(W, 4), vHR, L_LL - L_MM + 16))
    loads_at("Bv")
    for ks in range(4):
        a("s_waitcnt lgkmcnt(%d)" % (8 - 2 * ks))
        mfma(DO, AV + 4 * ks, BP + 4 * ks, ks == 0)
    a("s_waitcnt lgkmcnt(0)")
    a("v_add_f32 v%d, v%d, v%d" % (T8, T8, T8 + 1))
    a("v_add_f32 v%d, v%d, v%d" % (T8 + 2, T8 + 2, T8 + 3))
    a("v_add_f32 v%d, v%d, v%d" % (W, W, W + 1))
    a("v_add_f32 v%d, v%d, v%d" % (W + 2, W + 2, W + 3))
    a("v_add_f32 v%d, v%d, v%d" % (T8, T8, T8 + 2))
    a("v_add_f32 v%d, v%d, v%d" % (W, W, W + 2))
    a("v_mul_f32 v%d, 0x%x, v%d" % (RS, f2u(LOG2E), MG))
    a("v_add_f32 v%d, v%d, v%d" % (RS + 1, T8, W))
    exec32(0x000f000f)
    tagit(DO)
    pubstores([("ostore", vOP, 0, DO)])
    a("s_cmp_lg_u32 s5, 7")
    a("s_cbranch_scc1 L_noml")
    a("v_mov_b32 v%d, 0" % (RS + 2)); a("v_mov_b32 v%d, 0" % (RS + 3))
    tagit(RS)
    a("s_mov_b64 exec, 15")
    pubstores([(None, vMP, 0, RS)])
    a("L_noml:")
    a("s_mov_b64 exec, -1")
    g.stamp("opub")
    loads_at("opub")
    if not gu_early and not vlast and not gu_mid:
        gu_section()
    if vlast or gu_mid:
        b_consume(W + 44)
    if sched.get("powait"):
        g.wait(sched["powait"])
    if podelay: a("s_sleep %d" % podelay)
    loads_at("prepo")
    poll([pollld["po"], pollld["pm"]], [PO, PM], ("po", "pm"), "c_po", sleep=posleep)
    g.stamp("po")
    H2 = W + 20
    Mx, Tm, Wt, Lr = H2, H2 + 1, H2 + 2, H2 + 3
    a("v_and_b32 v%d, s%d, v%d" % (PM, sMASK, PM))
    a("v_and_b32 v%d, s%d, v%d" % (PM + 1, sMASK, PM + 1))
    a("v_and_b32 v%d, s%d, v%d" % (PO, sMASK, PO))
    a("v_max_f32_dpp v%d, v%d, v%d row_ror:8 row_mask:0xf bank_mask:0xf" % (Mx, PM, PM))
    a("v_and_b32 v%d, s%d, v%d" % (PO + 1, sMASK, PO + 1))
    a("v_and_b32 v%d, s%d, v%d" % (PO + 2, sMASK, PO + 2))
    a("v_max_f32_dpp v%d, v%d, v%d row_ror:4 row_mask:0xf bank_mask:0xf" % (Mx, Mx, Mx))
    a("v_and_b32 v%d, s%d, v%d" % (PO + 3, sMASK, PO + 3))
    a("v_and_b32 v%d, 1, v%d" % (t0, vRHO))
    a("v_max_f32_dpp v%d, v%d, v%d row_ror:2 row_mask:0xf bank_mask:0xf" % (Mx, Mx, Mx))
    a("v_lshrrev_b32 v%d, 1, v%d" % (t1, vRHO))
    a("v_lshl_add_u32 v%d, v%d, 2, v%d" % (t0, t1, t0))
    a("v_max_f32_dpp v%d, v%d, v%d row_ror:1 row_mask:0xf bank_mask:0xf" % (Mx, Mx, Mx))
    a("s_lshl_b32 s8, s5, 4"); a("s_add_u32 s8, s8, %d" % L_OH)
    a("v_mov_b32 v%d, v%d" % (Tm, Mx))
    a("v_lshl_add_u32 v%d, v%d, 1, s8" % (t2, t0))
    a("s_nop 0")
    a("v_permlane16_swap_b32 v%d, v%d" % (Mx, Tm))
    a("v_max_f32 v%d, v%d, v%d" % (Mx, Mx, Tm))
    a("v_sub_f32 v%d, v%d, v%d" % (Wt, PM, Mx))
    a("v_exp_f32 v%d, v%d" % (Wt, Wt))
    a("s_nop 0")
    a("v_mul_f32 v%d, v%d, v%d" % (Lr, Wt, PM + 1))
    for k in range(4):
        a("v_mul_f32 v%d, v%d, v%d" % (PO + k, PO + k, Wt))
    a("v_mov_b32 v%d, v%d" % (Tm, Lr))
    a("s_nop 0")
    a("v_permlane16_swap_b32 v%d, v%d" % (PO, PO + 1))
    a("v_permlane16_swap_b32 v%d, v%d" % (PO + 2, PO + 3))
    a("v_permlane16_swap_b32 v%d, v%d" % (Lr, Tm))
    a("v_add_f32 v%d, v%d, v%d" % (PO, PO, PO + 1))
    a("v_add_f32 v%d, v%d, v%d" % (PO + 2, PO + 2, PO + 3))
    a("v_add_f32 v%d, v%d, v%d" % (Lr, Lr, Tm))
    for rot in (8, 4, 2, 1):
        for r in (PO, PO + 2, Lr):
            a("v_add_f32_dpp v%d, v%d, v%d row_ror:%d row_mask:0xf bank_mask:0xf" % (r, r, r, rot))
    a("s_nop 0")
    a("v_rcp_f32 v%d, v%d" % (Lr, Lr))
    a("s_nop 0")
    a("v_mul_f32 v%d, v%d, v%d" % (PO, PO, Lr))
    a("v_mul_f32 v%d, v%d, v%d" % (PO + 2, PO + 2, Lr))
    a("v_cvt_pk_bf16_f32 v%d, v%d, v%d" % (PO, PO, PO))
    a("v_cvt_pk_bf16_f32 v%d, v%d, v%d" % (PO + 2, PO + 2, PO + 2))
    exec32(0x00010001)
    a("ds_write_b16 v%d, v%d" % (t2, PO))
    a("ds_write_b16 v%d, v%d offset:4" % (t2, PO + 2))
    a("s_mov_b64 exec, -1")
    g.stamp("odone")
    loads_at("odone")
    if not gu_early and not vlast and not gu_mid:
        b_consume(W + 20)
    g.wait("wo0", "wo1", "dn", lgkm=True)
    g.stamp("preBo")
    a("s_barrier")
    AWO = W; BO = W + 12; DF = W + 24
    for ks in (2, 0, 1):
        trd(AWO + 4 * ks, vTRO, ks * 8192)
        a("ds_read_b128 %s, v%d offset:%d" % (V(BO + 4 * ks, 4), vOH, ks * 64))
    for i, ks in enumerate((2, 0, 1)):
        a("s_waitcnt lgkmcnt(%d)" % (6 - 3 * i))
        mfma(DF, AWO + 4 * ks, BO + 4 * ks, i == 0)
    exec32(0x00010001)
    a("s_nop 5")
    tagit(DF)
    a("global_store_dwordx4 v%d, %s, %s %s" % (vPP, V(DF, 4), P(pWS), pst))
    a("s_mov_b64 exec, -1")
    g.stamp("ppub")
    a("s_cmp_lg_u32 s5, 0")
    a("s_cbranch_scc1 L_end")
    a("s_cmp_ge_u32 s2, 128")
    a("s_cbranch_scc1 L_fin")
    PF = PQ0
    a("s_lshl_b32 s8, s2, 10")
    a("s_add_u32 s8, s8, %d" % WS_P)
    a("v_add_u32 v%d, s8, v%d" % (vPQ, vX16))
    ldPF = ld(PF, vPQ).replace(" sc1", " " + pfl)
    if pfdelay: a("s_sleep %d" % pfdelay)
    g.q = []
    g.issue("pf", ldPF)
    a("s_lshl_b32 s8, s2, 2")
    a("v_add_u32 v%d, s8, v%d" % (t3, vPERM))
    a("v_lshlrev_b32 v%d, 1, v%d" % (t3, t3))
    a("v_add_u32 v%d, %d, v%d" % (t2, L_XR, t3))
    a("ds_read_u16 v%d, v%d" % (W, t2))
    poll([ldPF], [PF], ("pf",), "c_pf", sleep=pfsleep)
    g.stamp("pf")
    for k in range(4):
        a("v_and_b32 v%d, s%d, v%d" % (PF + k, sMASK, PF + k))
    a("s_nop 0")
    a("v_permlane32_swap_b32 v%d, v%d" % (PF, PF + 1))
    a("v_permlane32_swap_b32 v%d, v%d" % (PF + 2, PF + 3))
    a("v_add_f32 v%d, v%d, v%d" % (PF, PF, PF + 1))
    a("v_add_f32 v%d, v%d, v%d" % (PF + 2, PF + 2, PF + 3))
    a("s_nop 1")
    a("v_permlane16_swap_b32 v%d, v%d" % (PF, PF + 2))
    a("v_add_f32 v%d, v%d, v%d" % (PF, PF, PF + 2))
    for rot in (8, 4, 2, 1):
        a("s_nop 1")
        a("v_add_f32_dpp v%d, v%d, v%d row_ror:%d row_mask:0xf bank_mask:0xf" % (PF, PF, PF, rot))
    a("s_waitcnt lgkmcnt(0)")
    a("v_lshlrev_b32 v%d, 16, v%d" % (W, W))
    a("v_add_f32 v%d, v%d, v%d" % (PF, PF, W))
    a("v_cvt_pk_bf16_f32 v%d, v%d, v%d" % (PF, PF, PF))
    exec32(0x00010001)
    a("global_store_short v%d, v%d, %s" % (t3, PF, P(pOUT)))
    a("s_mov_b64 exec, -1")
    a("s_cmp_lg_u32 s2, 0")
    a("s_cbranch_scc1 L_fin")
    a("v_mov_b32 v%d, 0" % t0); a("v_mov_b32 v%d, s%d" % (t1, sE))
    a("s_mov_b64 exec, 1")
    a("global_store_dword v%d, v%d, %s sc1" % (t0, t1, P(pWS)))
    a("s_mov_b64 exec, -1")
    a("L_fin:")
    if hold:
        a("s_waitcnt lgkmcnt(0)")
        a("s_add_u32 s98, s98, %d" % hold)
        a("L_hold:")
        a("s_memrealtime s[96:97]")
        a("s_waitcnt lgkmcnt(0)")
        a("s_sub_u32 s8, s96, s98")
        a("s_cmp_lt_i32 s8, 0")
        a("s_cbranch_scc1 L_hold")
    g.stamp("end")
    a("L_end:")
    if g.stamps:
        a("s_cmp_ge_u32 s2, 256")
        a("s_cbranch_scc1 L_end2")
        a("s_waitcnt lgkmcnt(0) vmcnt(0)")
        a("s_lshl_b32 s8, s2, 3"); a("s_add_u32 s8, s8, s5"); a("s_lshl_b32 s8, s8, 8"); a("s_add_u32 s8, s8, %d" % WS_ST)
        a("v_mov_b32 v1, s8")
        a("s_mov_b64 exec, 1")
        for k in range(21):
            a("v_mov_b32 v4, s%d" % (58 + 2 * k)); a("v_mov_b32 v5, s%d" % (59 + 2 * k))
            a("global_store_dwordx2 v1, v[4:5], %s offset:%d" % (P(pWS), 8 * k))
        a("L_end2:")
    text = a.text()
    probs = hazard.check(text, verbose=False)
    for p in probs: print("HAZARD:", p)
    return wrap(text, 256, 512, LDS_BYTES, 136, 100), g.stnames

STB = ["entry", "karg", "wq", "qpub", "kw", "pq", "c_pq", "Bp", "v", "opub", "gu", "gpub", "po", "c_po", "pg", "preBo", "ppub", "pf", "c_pf", "end"]
STA = ["entry", "karg", "issue0", "addr", "x", "ln", "wq", "qpub", "kw", "pq", "Bq", "Bm", "Bp", "v", "opub", "end"]
def emit(name, st=None, **kw):
    open(name + ".s", "w").write(gen(**kw)[0])
    t, names = gen(stamps=st or STB, **kw)
    open(name + "_st.s", "w").write(t); open(name + "_st.names", "w").write(" ".join(names))
    t, names = gen(stamps=["entry", "end"], **kw)
    open(name + "_e_st.s", "w").write(t); open(name + "_e_st.names", "w").write(" ".join(names))
if __name__ == "__main__":
    STC = ["entry", "karg", "issue0", "addr", "ln", "prewq", "wq", "qpub", "kw", "pq", "Bp", "v", "opub", "gu", "po", "preBo", "ppub", "pf", "end"]
    STD = ["entry", "wq", "qpub", "kw", "pq", "c_pq", "Bq", "Bm", "Bp", "v", "opub", "gpub", "po", "c_po", "pg", "preBo", "ppub", "pf", "end"]
    S_W = {"mid": [], "Bx": ["k0", "k1", "k2"], "pre": [("k0", ["k3"]), ("k1", ["v0"]), ("k3", ["pq0", "pq1", "BAR"])], "post": ["v1", "v2", "v3"],
           "pq": ["gt"], "preBq": ["up"], "Bq": ["wo0"], "Bm": ["wo1"], "Bp": ["dn"], "gpub": ["po", "pm", "pg"]}
    S_X = {"mid": ["gt"], "Bx": ["up", "k0", "k1"], "Bg": ["k2", "k3"],
           "pre": [("k0", ["v0"]), ("k3", ["pq0", "pq1", "BAR", "v1", "v2", "v3"])], "post": [],
           "pq": ["wo0"], "Bq": ["wo1"], "Bm": ["dn"], "Bp": ["pg"], "prepo": ["po", "pm"]}
    STP = ["entry", "pq", "opub", "po", "ppub", "pf", "end"]
    STV = ["entry", "wq", "qpub", "gu", "kw", "pq", "Bq", "Bm", "Bp", "v", "opub", "hdone", "po", "odone", "ppub", "pf", "end"]
    P_ = dict(pfdelay=10, pfsleep=3, posleep=1)
    emit("v4_a", sched=S_X, st=STV, vlast=True, **P_)
    X2 = dict(S_X, Bg=["k2", "k3", "PT"])
    Q_ = dict(st=STV, vlast=True, lazyqb=True, pretouch=False)
    emit("v4_b", sched=X2, **Q_, **P_)
    emit("v4_c", sched=dict(X2, mid=["gt", "up"], Bx=["k0", "k1"]), **Q_, **P_)
    emit("v4_d", sched=dict(X2, Bg=["k2", "k3"], qpub=["PT"]), **Q_, **P_)
    emit("v4_e", sched=dict(X2, pq=["wo0"], Bq=[], preBm=["wo1"], Bm=[], preBp=["dn"]), **Q_, **P_)
```

```python
import sys, importlib
import gen_v4 as G
def emit(name, st, **kw):
    t, names = G.gen(stamps=st, **kw)
    open("sw_%s_st.s" % name, "w").write(t); open("sw_%s_st.names" % name, "w").write(" ".join(names))
    open("sw_%s.s" % name, "w").write(G.gen(**kw)[0])
ST = ["entry", "wq", "kw", "pq", "Bp", "v", "opub", "po", "ppub", "pf", "end"]
P_ = dict(pfdelay=10, pfsleep=3, posleep=1, vlast=True, lazyqb=True, pretouch=False)
BASE = {"mid": ["gt", "up"], "Bx": ["k0", "k1"], "Bg": ["k2", "k3", "PT"],
        "pre": [("k0", ["v0"]), ("k3", ["pq0", "pq1", "BAR", "v1", "v2", "v3"])], "post": [],
        "pq": ["wo0"], "Bq": ["wo1"], "Bm": ["dn"], "Bp": ["pg"], "prepo": ["po", "pm"]}
V = {}
V["a"] = (BASE, {})
V["b"] = (dict(BASE, Bx=[], preBx=["k0", "k1"], Bg=["PT"], preBg=["k2", "k3"]), {})
V["c"] = (dict(BASE, Bx=[], preBx=["k0", "k1"], Bg=["PT"], preBg=["k2", "k3"], pre=[("k0", ["v0"]), ("k1", ["v1"]), ("k3", ["pq0", "pq1", "BAR", "v2", "v3"])]), {})
V["d"] = (dict(BASE, Bx=[], preBx=["k0", "k1"], Bg=["PT"], preBg=["k2", "k3"], pre=[("k0", ["v0"]), ("k2", ["pq0", "pq1", "BAR", "v1", "v2"])], pq=["v3"], preBq=["wo0"], Bq=[], preBm=["wo1"], Bm=[], preBp=["dn"]), dict(klate=True))
V["e"] = (dict(BASE, Bx=[], preBx=["k0", "k1"], Bg=["PT"], preBg=["k2", "k3"], pre=[("k1", ["pq0", "pq1", "BAR", "v0", "v1"])], pq=["v2"], preBq=["v3"], Bq=[], preK=[("k2", ["wo0"])], preBm=["wo1"], Bm=[], preBp=["dn"]), dict(klate=True))
V["f"] = (dict(BASE, pq=["wo0", "wo1"], Bq=["dn"], Bm=[]), {})
V["g"] = (dict(BASE, pq=[], preBq=["wo0"], Bq=[], preBm=["wo1"], Bm=[], preBp=["dn"]), {})
V["h"] = (dict(BASE, mid=["gt", "up", "k0"], Bx=["k1"], pre=[("k0", ["v0"]), ("k3", ["pq0", "pq1", "BAR", "v1", "v2", "v3"])]), {})
if __name__ == "__main__":
    sel = sys.argv[1:] or list(V.keys())
    for k in sel:
        sc, kw = V[k]
        emit(k, ST, sched=sc, **P_, **kw)
    print(" ".join('"dev/sw_%s_st.s", "dev/sw_%s_st.names",' % (k, k) for k in sel))
```
